```python
import torch

def _softmax(x, axis=-1):
    return torch.softmax(x, dim=axis)

def _gelu(x):
    return torch.nn.functional.gelu(x, approximate='tanh')

def _silu(x):
    return torch.nn.functional.silu(x)

def _sigmoid(x):
    return torch.sigmoid(x)

def _layernorm(x, axis=-1, eps=1e-05):
    m = x.mean(dim=axis, keepdim=True)
    v = x.var(dim=axis, keepdim=True, unbiased=False)
    return (x - m) / torch.sqrt(v + eps)

def _scatter_add(tgt, idx, src, axis=0):
    return tgt.clone().index_add_(axis, idx, src)

def _segment_sum(src, seg, n):
    out = torch.zeros((n,) + src.shape[1:], dtype=src.dtype)
    return out.index_add_(0, seg, src)

def _pad(x, pw):
    flat = tuple((v for pair in reversed(pw) for v in pair))
    return torch.nn.functional.pad(x, flat)
kernel_name = 'adaLN_cond__gqa_block_cached__geglu_ffn__decode'

def setup_inputs():

    _w = lambda a: (lambda t: t.to(torch.bfloat16) if t.is_floating_point() else t)(torch.as_tensor(a))

    def _A_setup():
        B, Sq, D = (1, 1, 512)
        Hq, Hkv, Sk, Dh = (32, 8, 16384, 128)
        assert Hq % Hkv == 0, (Hq, Hkv)
        return {'x': _w((lambda *s: torch.randn(*s, dtype=torch.bfloat16) * 0.1)(B, Sq, D)), 'k_cache': _w((lambda *s: torch.randn(*s, dtype=torch.bfloat16) * 0.8)(B, Hkv, Sk, Dh)), 'v_cache': _w((lambda *s: torch.randn(*s, dtype=torch.bfloat16) * 0.8)(B, Hkv, Sk, Dh)), 'wq': _w((lambda *s: torch.randn(*s, dtype=torch.bfloat16) * 0.8)(D, Hq * Dh) * D ** (-0.5)), 'wo': _w((lambda *s: torch.randn(*s, dtype=torch.bfloat16) * 0.8)(Hq * Dh, D) * (Hq * Dh) ** (-0.5))}
    _A_in = _A_setup()

    def _B_setup():
        B, S, D, F = (1, 1, 512, 1792)
        return {'x': _w((lambda *s: torch.randn(*s, dtype=torch.bfloat16) * 0.1)(B, S, D)), 'w_gate': _w((lambda *s: torch.randn(*s, dtype=torch.bfloat16) * 0.1)(D, F)), 'w_up': _w((lambda *s: torch.randn(*s, dtype=torch.bfloat16) * 0.1)(D, F)), 'w_down': _w((lambda *s: torch.randn(*s, dtype=torch.bfloat16) * 0.1)(F, D))}
    _B_in = _B_setup()
    return {'A_x': _A_in['x'], 'A_k_cache': _A_in['k_cache'], 'A_v_cache': _A_in['v_cache'], 'A_wq': _A_in['wq'], 'A_wo': _A_in['wo'], 'B_x': _B_in['x'], 'B_w_gate': _B_in['w_gate'], 'B_w_up': _B_in['w_up'], 'B_w_down': _B_in['w_down'], 'c': _w((lambda *s: torch.randn(*s, dtype=torch.bfloat16) * 0.4)(1, 512) * 8.0), 'w_mod': _w((lambda *s: torch.randn(*s, dtype=torch.bfloat16) * 0.4)(512, 6 * 512) * 512 ** (-0.5) * 8.0)}

def reference(A_x, A_k_cache, A_v_cache, A_wq, A_wo, B_x, B_w_gate, B_w_up, B_w_down, c, w_mod):

    def _A_ref(x, k_cache, v_cache, wq, wo):
        B, Sq, D = x.shape
        Hq, Dh = (32, 128)
        Hkv = k_cache.shape[1]
        rep = Hq // Hkv
        q = (lambda x, *d: x.permute(*d))((x @ wq).reshape(B, Sq, Hq, Dh), 0, 2, 1, 3)
        k = (lambda x, n, axis: torch.repeat_interleave(x, n, dim=axis))(k_cache, rep, axis=1)
        v = (lambda x, n, axis: torch.repeat_interleave(x, n, dim=axis))(v_cache, rep, axis=1)
        scores = torch.einsum('bhqd,bhkd->bhqk', q, k) * Dh ** (-0.5)
        p = _softmax(scores, axis=-1)
        o = torch.einsum('bhqk,bhkd->bhqd', p, v)
        return (lambda x, *d: x.permute(*d))(o, 0, 2, 1, 3).reshape(B, Sq, Hq * Dh) @ wo

    def _B_ref(x, w_gate, w_up, w_down):
        return _gelu(x @ w_gate) * (x @ w_up) @ w_down
    x = A_x
    mod = (_silu(c) @ w_mod).reshape(c.shape[0], 6, 1, -1)
    sa, ca, ga, sb, cb, gb = (mod[:, 0].clone(), mod[:, 1].clone(), mod[:, 2].clone(), mod[:, 3].clone(), mod[:, 4].clone(), mod[:, 5].clone())
    h = _layernorm(x, axis=-1) * (1 + ca) + sa
    x = x + ga * _A_ref(h, A_k_cache, A_v_cache, A_wq, A_wo)
    h = _layernorm(x, axis=-1) * (1 + cb) + sb
    x = x + gb * _B_ref(h, B_w_gate, B_w_up, B_w_down)
    return x
```

```python
import re
TRANS = ("v_exp_f32", "v_log_f32", "v_rcp_f32", "v_rsq_f32", "v_sqrt_f32", "v_sin_f32", "v_cos_f32")
REG = re.compile(r"(?<![\w\[])([vsa])(\d+)(?![\w:])|(?<![\w])([vsa])\[(\d+):(\d+)\]|\b(vcc|exec)(_lo|_hi)?\b")

def regs_in(tok):
    out = []
    for m in REG.finditer(tok):
        if m.group(1): out.append((m.group(1), int(m.group(2))))
        elif m.group(3): out += [(m.group(3), i) for i in range(int(m.group(4)), int(m.group(5)) + 1)]
        elif m.group(6) == "vcc":
            if m.group(7) == "_lo": out.append(("s", 106))
            elif m.group(7) == "_hi": out.append(("s", 107))
            else: out += [("s", 106), ("s", 107)]
        else: out.append(("x", 0))
    return out

def split_ops(s):
    ops = []; depth = 0; cur = ""
    for ch in s:
        if ch == "[": depth += 1
        if ch == "]": depth -= 1
        if ch == "," and depth == 0: ops.append(cur.strip()); cur = ""
        else: cur += ch
    if cur.strip(): ops.append(cur.strip())
    return ops

class Em:
    def __init__(self):
        self.lines = []
        self.slot = 0
        self.vw = {}
        self.sw = {}
        self.cread = {}
        self.stdata = {}
        self.nlab = 0
        self.maxv = 0
        self.maxs = 0
    def raw(self, t): self.lines.append(t)
    def c(self, t): self.lines.append("  ; " + t)
    def label(self, name):
        self.lines.append(name + ":")
    def newlab(self, p="L"):
        self.nlab += 1
        return f"{p}_{self.nlab}"
    def nop(self, n):
        while n > 0:
            k = min(n, 16)
            self.lines.append(f"  s_nop {k-1}")
            self.slot += k; n -= k
    def flush(self, n=8):
        need = 0
        for r, (sl, kind, mn, rng) in self.vw.items():
            req = {"mfma": 8, "dot": 3, "trans": 2, "valu": 2}[kind]
            need = max(need, req - (self.slot - sl - 1))
        for r, sl in self.sw.items(): need = max(need, 5 - (self.slot - sl - 1))
        for r, sl in self.cread.items(): need = max(need, 3 - (self.slot - sl - 1))
        for r, sl in self.stdata.items(): need = max(need, 2 - (self.slot - sl - 1))
        if need > 0: self.nop(need)
    def __call__(self, text):
        for t in text.strip().split("\n"):
            t = t.strip()
            if not t or t.startswith(";"):
                if t: self.lines.append("  " + t)
                continue
            if t.endswith(":"): self.label(t[:-1]); continue
            self.I(t)
    def I(self, text):
        code = text.split(";")[0].strip()
        parts = code.split(None, 1)
        mn = parts[0]
        rest = parts[1] if len(parts) > 1 else ""
        ops = split_ops(rest)
        optoks = []
        for i, o in enumerate(ops):
            optoks.append(o.split()[0] if (i == len(ops) - 1 and o) else o)
        is_valu = mn.startswith("v_")
        is_mfma = mn.startswith("v_mfma")
        is_dpp = "_dpp" in mn or " row_" in code or "quad_perm" in code
        is_perml = mn.startswith("v_permlane")
        is_rl = mn in ("v_readlane_b32", "v_readfirstlane_b32")
        is_dot = mn.startswith("v_dot2")
        is_trans = mn.replace("_e32", "").replace("_e64", "") in TRANS
        is_vmem = mn.startswith(("global_", "buffer_", "flat_"))
        is_ds = mn.startswith("ds_")
        is_store = is_vmem and ("store" in mn or ("atomic" in mn))
        w = []; r = []
        R = [regs_in(o) for o in optoks]
        for rr in R:
            for k, n in rr:
                if k == "v": self.maxv = max(self.maxv, n)
                if k == "s" and n < 106: self.maxs = max(self.maxs, n)
        if is_valu:
            if mn in ("v_swap_b32",) or (is_perml and "swap" in mn):
                w = R[0] + R[1]; r = R[0] + R[1]
            elif mn.startswith(("v_add_co", "v_sub_co", "v_addc_co", "v_subb_co", "v_div_scale", "v_mad_u64")):
                w = R[0] + R[1]; r = sum(R[2:], [])
            else:
                w = R[0]; r = sum(R[1:], [])
                if mn.startswith(("v_fmac", "v_dot2c", "v_mac")) or is_dpp or mn.startswith("v_writelane"): r = r + R[0]
                if mn.startswith("v_cndmask") and len(ops) == 3: r += [("s", 106), ("s", 107)]
        elif is_vmem:
            if "load" in mn and "lds" not in code:
                w = []; r = sum(R[1:], [])
                ldst = R[0]
            else:
                r = sum(R, [])
        elif is_ds:
            if mn.startswith(("ds_read", "ds_bpermute", "ds_permute", "ds_swizzle")) or "_rtn" in mn:
                r = sum(R[1:], [])
            else: r = sum(R, [])
        need = 0
        def gap(sl): return self.slot - sl - 1
        for idx, rr in enumerate(R):
            for reg in rr:
                if reg[0] != "v": continue
                reading = reg in r
                writing = reg in w or ((is_vmem or is_ds) and idx == 0 and not reading)
                if reg in self.vw:
                    sl, kind, pmn, rng = self.vw[reg]
                    req = 0
                    if kind == "mfma":
                        if is_mfma:
                            if idx == 3: req = 0 if (tuple(rr) == rng) else 6
                            elif idx in (1, 2): req = 8
                            elif idx == 0: req = 0 if (tuple(rr) == rng) else 6
                        elif reading or writing: req = 8
                    else:
                        if reading:
                            if is_mfma and idx >= 1: req = max(req, 2)
                            if is_dpp and idx == 1: req = max(req, 2)
                            if is_perml: req = max(req, 2)
                            if is_rl: req = max(req, 1)
                            if kind == "trans" and not is_trans: req = max(req, 1)
                        if kind == "dot" and (reading or writing):
                            if is_dot and mn == pmn and ((idx == 3) or (idx == 0)): pass
                            else: req = max(req, 3)
                    need = max(need, req - gap(sl))
                if is_valu and not is_mfma and reg in w:
                    if reg in self.cread: need = max(need, 3 - gap(self.cread[reg]))
                    if reg in self.stdata: need = max(need, 2 - gap(self.stdata[reg]))
        for idx, rr in enumerate(R):
            for reg in rr:
                if reg[0] == "s" and reg in self.sw and reg in r:
                    g = gap(self.sw[reg])
                    if is_vmem: need = max(need, 5 - g)
                    elif is_valu:
                        if mn in ("v_readlane_b32", "v_writelane_b32") and idx == 2: need = max(need, 4 - g)
                        else: need = max(need, 2 - g)
        if mn.startswith("v_cndmask") and len(ops) == 3:
            for reg in (("s", 106), ("s", 107)):
                if reg in self.sw: need = max(need, 2 - gap(self.sw[reg]))
        if mn.startswith("s_") and not mn.startswith(("s_nop", "s_waitcnt", "s_barrier", "s_branch", "s_cbranch", "s_endpgm", "s_sleep", "s_setprio")):
            for rr in R[1:] if len(R) > 1 else []:
                for reg in rr:
                    if reg[0] == "s" and reg in self.sw: need = max(need, 1 - gap(self.sw[reg]))
            if mn.startswith("s_cmp"):
                for reg in R[0]:
                    if reg[0] == "s" and reg in self.sw: need = max(need, 1 - gap(self.sw[reg]))
        if need > 0: self.nop(need)
        self.lines.append("  " + text)
        if mn == "s_nop":
            self.slot += int(ops[0]) + 1
            return
        cur = self.slot
        self.slot += 1
        if is_valu:
            kind = "mfma" if is_mfma else "dot" if is_dot else "trans" if is_trans else "valu"
            for reg in w:
                if reg[0] == "v": self.vw[reg] = (cur, kind, mn, tuple(R[0]))
                elif reg[0] == "s": self.sw[reg] = cur
            if is_mfma and len(R) > 3:
                for reg in R[3]:
                    if reg[0] == "v": self.cread[reg] = cur
        elif mn.startswith("s_"):
            if R and not mn.startswith(("s_cmp", "s_cbranch", "s_waitcnt", "s_bitcmp")):
                for reg in R[0]:
                    if reg in self.sw: del self.sw[reg]
        if is_store and ("x4" in mn or "x3" in mn):
            d = R[1] if mn.startswith("global_") else R[0]
            for reg in d: self.stdata[reg] = cur
        if is_ds and mn in ("ds_write_b128", "ds_write_b96"):
            for reg in R[1]: self.stdata[reg] = cur
        if (is_vmem and "load" in mn) or (is_ds and mn.startswith("ds_read")):
            for reg in R[0]:
                if reg in self.vw: del self.vw[reg]
    def text(self): return "\n".join(self.lines) + "\n"
```

```python
import sys, os
sys.path.insert(0, os.path.dirname(os.path.abspath(__file__)))
from em import Em

OPT = dict(profile=0, depth=4, dry=1, ntw="nt", nts="nt", force_global=0, spin=1 << 18)
for a in sys.argv[1:]:
    k, v = a.split("=")
    OPT[k] = int(v) if v.lstrip("-").isdigit() else v
PROFILE = OPT["profile"]
DEPTH = OPT["depth"]
NT = OPT["ntw"] if OPT["ntw"] != "-" else ""
NTS = OPT["nts"] if OPT["nts"] != "-" else ""
KNAME = "adaLN_cond__gqa_block_cached__geglu_ffn__decode_kernel"

H_IN = 0x0; Q_IN = 0x1000; MOD_IN = 0x3000; X1_IN = 0x4000; ML_IN = 0x5000
A_IN = 0x7000; F_IN = 0x17000; O_IN = 0x27000
CLR_BASE = 0x1000; CLR_PER = 10240
TS_BASE = 0x8000000
L_FLAG = 0; L_WMAX = 64; L_LP = 192; L_QB = 512; L_RED = 2048; L_RED2 = 18432; LDS_SIZE = 22528
LOG2E = 0x3fb8aa3b
SCALE = 0x3db504f3

e = Em()
DPPALL = "row_mask:0xf bank_mask:0xf"

def ror(n, bm=0xf):
    n %= 16
    if n == 0: return f"quad_perm:[0,1,2,3] row_mask:0xf bank_mask:0x{bm:x}"
    return f"row_ror:{n} row_mask:0xf bank_mask:0x{bm:x}"

class Guard:
    def __enter__(self):
        self.l = e.newlab("Lg")
        e(f"s_cbranch_execz {self.l}")
    def __exit__(self, *a):
        e.label(self.l)

def setexec(lo, hi):
    if lo == 0xffffffff and hi == 0xffffffff:
        e("s_mov_b64 exec, s[6:7]")
    else:
        e(f"s_and_b32 exec_lo, s6, 0x{lo:x}")
        e(f"s_and_b32 exec_hi, s7, 0x{hi:x}")

def fullexec(): e("s_mov_b64 exec, s[6:7]")

nstamp = [0]
def stamp(k):
    if PROFILE:
        e(f"s_memrealtime s[{80+2*k}:{81+2*k}]")

def rnd_bf16(dst, src):
    e(f"v_cvt_pk_bf16_f32 {dst}, {src}, {src}")
    e(f"v_lshlrev_b32 {dst}, 16, {dst}")

def poll_begin():
    l = e.newlab("Lp"); g = e.newlab("Lq")
    e(f"s_mov_b32 s63, {OPT['spin']}")
    e.flush()
    e.label(l)
    e("s_sub_u32 s63, s63, 1")
    e(f"s_cbranch_scc1 {g}")
    return l, g

def poll_end(lg, regs, tmp):
    l, g = lg
    rs = list(regs)
    cur = rs.pop(0)
    first = True
    while rs:
        if len(rs) >= 2:
            e(f"v_max3_u32 {tmp}, {cur}, {rs[0]}, {rs[1]}"); rs = rs[2:]
        else:
            e(f"v_max_u32 {tmp}, {cur}, {rs[0]}"); rs = rs[1:]
        cur = tmp
    e(f"v_cmp_eq_u32 vcc, -1, {cur}")
    e(f"s_cbranch_vccnz {l}")
    e.label(g)

def vr(b, n=4): return f"v[{b}:{b+n-1}]"

def red_T32(a, b):
    e(f"v_permlane32_swap_b32 v{a}, v{b}")
    e(f"v_add_f32 v{a}, v{a}, v{b}")

def red_T16(a, b):
    e(f"v_permlane16_swap_b32 v{a}, v{b}")
    e(f"v_add_f32 v{a}, v{a}, v{b}")

def red_T8(dst, a, b):
    e(f"v_add_f32_dpp v{dst}, v{a}, v{a} {ror(8, 0x3)}")
    e(f"v_add_f32_dpp v{dst}, v{b}, v{b} {ror(8, 0xc)}")

def red_T4(dst, a, b):
    e(f"v_add_f32_dpp v{dst}, v{a}, v{a} {ror(12, 0x5)}")
    e(f"v_add_f32_dpp v{dst}, v{b}, v{b} {ror(4, 0xa)}")

def red_plain(op, a, t, bits):
    for b in bits:
        if b == 5:
            e(f"v_mov_b32 v{t}, v{a}")
            e(f"v_permlane32_swap_b32 v{a}, v{t}")
            e(f"{op} v{a}, v{a}, v{t}")
        elif b == 4:
            e(f"v_mov_b32 v{t}, v{a}")
            e(f"v_permlane16_swap_b32 v{a}, v{t}")
            e(f"{op} v{a}, v{a}, v{t}")
        elif b == 3:
            e(f"{op}_dpp v{a}, v{a}, v{a} {ror(8)}")
        elif b == 2:
            e(f"{op}_dpp v{a}, v{a}, v{a} {ror(4)}")
        elif b == 1:
            e(f"{op}_dpp v{a}, v{a}, v{a} quad_perm:[2,3,0,1] {DPPALL}")
        elif b == 0:
            e(f"{op}_dpp v{a}, v{a}, v{a} quad_perm:[1,0,3,2] {DPPALL}")

def ln_stats(xr, t0):
    S, Q, T, U = t0, t0 + 1, t0 + 2, t0 + 3
    for k in range(4):
        e(f"v_lshlrev_b32 v{T}, 16, v{xr+k}")
        e(f"v_and_b32 v{U}, 0xffff0000, v{xr+k}")
        if k == 0:
            e(f"v_add_f32 v{S}, v{T}, v{U}")
            e(f"v_mul_f32 v{Q}, v{T}, v{T}")
        else:
            e(f"v_add_f32 v{S}, v{S}, v{T}")
            e(f"v_fmac_f32 v{Q}, v{T}, v{T}")
            e(f"v_add_f32 v{S}, v{S}, v{U}")
        e(f"v_fmac_f32 v{Q}, v{U}, v{U}")
    red_T32(S, Q)
    red_plain("v_add_f32", S, T, [4, 3, 2, 1, 0])
    e(f"v_readlane_b32 s64, v{S}, 0")
    e(f"v_readlane_b32 s65, v{S}, 32")
    e(f"v_mov_b32 v{T}, 0x3b000000")
    e(f"v_mul_f32 v{S}, s64, v{T}")
    e(f"v_mul_f32 v{Q}, s65, v{T}")
    e(f"v_fma_f32 v{Q}, -v{S}, v{S}, v{Q}")
    e(f"v_max_f32 v{Q}, 0, v{Q}")
    e(f"v_cvt_pk_bf16_f32 v{S}, v{S}, v{Q}")
    e(f"v_and_b32 v{Q}, 0xffff0000, v{S}")
    e(f"v_lshlrev_b32 v{S}, 16, v{S}")
    e(f"v_add_f32 v{Q}, 0x3727c5ac, v{Q}")
    rnd_bf16(f"v{Q}", f"v{Q}")
    e(f"v_sqrt_f32 v{Q}, v{Q}")
    rnd_bf16(f"v{Q}", f"v{Q}")
    e(f"v_rcp_f32 v{T}, v{Q}")
    e(f"v_fma_f32 v{U}, -v{Q}, v{T}, 1.0")
    e(f"v_fma_f32 v{T}, v{U}, v{T}, v{T}")
    e(f"v_readfirstlane_b32 s64, v{S}")
    e(f"v_readfirstlane_b32 s65, v{T}")

def store_mode(instr_fmt):
    la = e.newlab("Ls"); lb = e.newlab("Ls")
    e.flush()
    e("s_cmp_lg_u32 s62, 0")
    e(f"s_cbranch_scc1 {la}")
    e(instr_fmt + " sc1")
    e(f"s_branch {lb}")
    e.label(la)
    e(instr_fmt)
    e.label(lb)
    e.nop(2)

hdr = open(os.path.join(os.path.dirname(os.path.abspath(__file__)), "..", "cdna_kernels", KNAME[:-7] + ".s.ref")).read().split("\n")
for l in hdr:
    if l.startswith("; @launch"): break
    if l.startswith(";"): e.raw(l)
e.raw(f"; @launch grid=(256,1,1) block=(512,1,1) lds={LDS_SIZE}")
e.raw('.amdgcn_target "amdgcn-amd-amdhsa--gfx950"')
e.raw(".text")
e.raw(f".globl {KNAME}")
e.raw(".p2align 8")
e.raw(f".type {KNAME},@function")
e.raw(f"{KNAME}:")

e(f"""
s_cmp_ge_u32 s2, 0x100
s_cbranch_scc1 L_end
s_load_dwordx16 s[8:23], s[0:1], 0
s_load_dwordx8 s[24:31], s[0:1], 64
s_load_dwordx4 s[32:35], s[0:1], 96
""")
if PROFILE:
    for k in range(82, 98): e(f"s_mov_b32 s{k}, 0")
stamp(0)
e(f"""
v_lshrrev_b32 v1, 6, v0
v_and_b32 v0, 63, v0
v_readfirstlane_b32 s3, v1
s_and_b32 s4, s2, 7
s_lshr_b32 s5, s2, 3
s_mov_b64 s[6:7], -1
v_mov_b32 v1, 0
ds_write_b32 v1, v1 offset:{L_FLAG}
v_lshlrev_b32 v2, 4, v0
s_mov_b32 s48, 0x05040100
s_mov_b32 s49, 0x07060302
s_lshl_b32 s50, s4, 5
s_add_u32 s50, s50, s5
s_mul_i32 s51, s5, 7
s_add_u32 s52, s51, s4
s_mul_i32 s51, s52, 2341
s_lshr_b32 s51, s51, 16
s_mul_i32 s46, s51, 28
s_sub_u32 s52, s52, s46
s_mov_b32 s53, s5
s_mov_b32 s47, 0
s_mov_b32 s62, 0
s_waitcnt lgkmcnt(0)
s_barrier
s_cmp_eq_u32 s3, 0
s_cbranch_scc1 L_chain
s_cmp_eq_u32 s4, 7
s_cbranch_scc1 L_tail_stream
""")

KB = 64; VB = 160; DA = 32; DB = 48; ACC = 16; QB = 4; SR = 8
NU = 6
e.label("L_att_stream")
e(f"""
s_sub_u32 s46, s3, 1
s_cmp_eq_u32 s52, 27
s_cselect_b32 s54, 3, 5
s_cselect_b32 s55, 4, 2
s_mul_i32 s56, s46, s54
s_min_u32 s57, s46, s55
s_add_u32 s56, s56, s57
s_mul_i32 s57, s52, 37
s_add_u32 s56, s56, s57
s_cmp_lt_u32 s46, s55
s_addc_u32 s54, s54, 0
s_lshl_b32 s55, s56, 12
s_lshl_b32 s46, s51, 22
s_add_u32 s36, s10, s46
s_addc_u32 s37, s11, 0
s_and_b32 s37, s37, 0xffff
s_mov_b32 s38, 0x400000
s_mov_b32 s39, 0x20000
s_add_u32 s40, s12, s46
s_addc_u32 s41, s13, 0
s_and_b32 s41, s41, 0xffff
s_mov_b32 s42, 0x400000
s_mov_b32 s43, 0x20000
v_bfe_u32 v3, v0, 2, 2
v_lshlrev_b32 v3, 8, v3
v_lshrrev_b32 v14, 4, v0
v_lshl_add_u32 v3, v14, 6, v3
v_and_b32 v14, 3, v0
v_lshl_add_u32 v3, v14, 4, v3
""")
for u in range(3, NU):
    e(f"s_cmp_gt_u32 s54, {u}")
    e(f"s_cselect_b32 s{56+u}, 0, 0xff800000")

def throttle():
    l = e.newlab("Lt")
    e("s_cmp_lg_u32 s47, 0")
    e(f"s_cbranch_scc1 {l}")
    e(f"s_waitcnt vmcnt({DEPTH})")
    e(f"ds_read_b32 v15, v1 offset:{L_FLAG}")
    e("s_waitcnt lgkmcnt(0)")
    e("v_readfirstlane_b32 s47, v15")
    e.flush()
    e.label(l)

grp = 0
for tens in range(2):
    srd = 36 if tens == 0 else 40
    base = KB if tens == 0 else VB
    voff = "v3" if tens == 0 else "v2"
    for u in range(NU):
        if u >= 3:
            e(f"s_cmp_gt_u32 s54, {u}")
            e(f"s_cselect_b32 s{srd+2}, 0x400000, 0")
        e(f"s_add_u32 s46, s55, {u*4096}")
        for j in range(4):
            e(f"buffer_load_dwordx4 {vr(base+16*u+4*j)}, {voff}, s[{srd}:{srd+3}], s46 offen offset:{j*1024} {NT}")
        grp += 1
        if OPT["dry"] and grp == 2:
            l = e.newlab("Ld")
            e("s_cmp_lg_u32 s3, 7")
            e(f"s_cbranch_scc1 {l}")
            e("s_mov_b64 s[6:7], 0")
            e("s_mov_b64 exec, 0")
            e("s_branch L_att_compute")
            e.label("L_att_dry_ret")
            e("s_mov_b64 s[6:7], -1")
            e("s_mov_b64 exec, -1")
            e.label(l)
        if grp >= 2 and grp < 2 * NU: throttle()
stamp(1)

e.label("L_att_compute")
with Guard():
    e("s_barrier")
e(f"ds_read_b128 {vr(QB)}, v2 offset:{L_QB}")
with Guard():
    e(f"s_waitcnt vmcnt({4*NU}) lgkmcnt(0)")
stamp(2)

def kmfma(u):
    D = DA if u % 2 == 0 else DB
    for j in range(4):
        e(f"v_mfma_f32_16x16x32_bf16 {vr(D+4*j)}, {vr(KB+16*u+4*j)}, {vr(QB)}, 0")

def kpost(u):
    D = DA if u % 2 == 0 else DB
    S = SR + u
    for b in range(4):
        for j in range(4):
            bb = (j + b) % 4
            mod = ror(4 * (j - bb), 1 << j)
            if b == 0: e(f"v_mov_b32_dpp v{S}, v{D+4*j+bb} {mod}")
            else: e(f"v_add_f32_dpp v{S}, v{D+4*j+bb}, v{S} {mod}")
    rnd_bf16(f"v{S}", f"v{S}")
    e(f"v_mul_f32 v{S}, 0x{SCALE:x}, v{S}")
    rnd_bf16(f"v{S}", f"v{S}")
    if u >= 3: e(f"v_add_f32 v{S}, s{56+u}, v{S}")

kmfma(0)
for u in range(NU):
    if u + 1 < NU: kmfma(u + 1)
    kpost(u)
e(f"v_max3_f32 v14, v{SR}, v{SR+1}, v{SR+2}")
e(f"v_max3_f32 v14, v14, v{SR+3}, v{SR+4}")
e(f"v_max_f32 v14, v14, v{SR+5}")
red_plain("v_max_f32", 14, 15, [3, 2, 4, 5])
e(f"""
v_and_b32 v3, 3, v0
v_lshlrev_b32 v3, 5, v3
s_lshl_b32 s46, s3, 2
s_sub_u32 s46, s46, 4
v_add_u32 v15, s46, v3
""")
setexec(0xf, 0)
e(f"ds_write_b32 v15, v14 offset:{L_WMAX}")
fullexec()
with Guard():
    e("s_waitcnt lgkmcnt(0)")
    e("s_barrier")
e(f"ds_read_b128 {vr(DA)}, v3 offset:{L_WMAX}")
e(f"ds_read_b128 {vr(DA+4)}, v3 offset:{L_WMAX+16}")
e("s_waitcnt lgkmcnt(0)")
e(f"v_max3_f32 v14, v{DA}, v{DA+1}, v{DA+2}")
e(f"v_max3_f32 v14, v14, v{DA+3}, v{DA+4}")
e(f"v_max3_f32 v14, v14, v{DA+5}, v{DA+6}")
e(f"s_mov_b32 s46, 0x{LOG2E:x}")
e(f"v_mul_f32 v{DB}, s46, v14")
PB = KB
TP = KB + 32
for u in range(NU):
    S = SR + u
    e(f"v_fma_f32 v{S}, v{S}, s46, -v{DB}")
for u in range(NU):
    e(f"v_exp_f32 v{SR+u}, v{SR+u}")
for u in range(NU):
    S = SR + u; B0 = PB + 4 * u; T = TP + 3 * u
    e(f"v_cvt_pk_bf16_f32 v{T}, v{S}, v{S}")
    e(f"v_and_b32 v{B0}, 0xffff, v{T}")
    e(f"v_and_b32 v{T+1}, 0xffff, v{T}")
    e(f"v_and_b32 v{T}, 0xffff0000, v{T}")
for u in range(NU):
    B0 = PB + 4 * u; T = TP + 3 * u
    e(f"v_mov_b32_dpp v{B0}, v{T} {ror(4, 0xa)}")
    e(f"v_mov_b32_dpp v{T+1}, v{T} {ror(4, 0x5)}")
for u in range(NU):
    B0 = PB + 4 * u; T = TP + 3 * u
    e(f"v_mov_b32_dpp v{B0+1}, v{T+1} {ror(12)}")
    e(f"v_mov_b32_dpp v{B0+2}, v{B0} {ror(8)}")
    e(f"v_mov_b32_dpp v{B0+3}, v{T+1} {ror(4)}")
e(f"v_add_f32 v{SR}, v{SR}, v{SR+1}")
e(f"v_add_f32 v{SR+2}, v{SR+2}, v{SR+3}")
e(f"v_add_f32 v{SR+4}, v{SR+4}, v{SR+5}")
e(f"v_add_f32 v{SR}, v{SR}, v{SR+2}")
e(f"v_add_f32 v{SR}, v{SR}, v{SR+4}")
red_plain("v_add_f32", SR, SR + 1, [3, 2, 4, 5])
setexec(0xf, 0)
e(f"ds_write_b32 v15, v{SR} offset:{L_LP}")
fullexec()
e(f"""
v_and_b32 v3, 3, v0
v_lshlrev_b32 v3, 9, v3
v_lshrrev_b32 v15, 4, v0
v_lshl_add_u32 v3, v15, 7, v3
v_bfe_u32 v15, v0, 2, 1
v_lshl_add_u32 v3, v15, 4, v3
s_lshl_b32 s46, s3, 11
v_add_u32 v3, s46, v3
""")
stamp(3)
for u in range(NU):
    with Guard():
        e(f"s_waitcnt vmcnt({4*(NU-1-u)})")
    V0 = VB + 16 * u
    for m in range(4):
        for r in range(m + 1, 4):
            e(f"v_swap_b32 v{V0+4*m+r}, v{V0+4*r+m}")
    for r in range(4):
        c = "0" if u == 0 else vr(ACC + 4 * r)
        e(f"v_mfma_f32_16x16x32_bf16 {vr(ACC+4*r)}, {vr(V0+4*r)}, {vr(PB+4*u)}, {c}")
stamp(4)
setexec(0x00ff00ff, 0x00ff00ff)
for r in range(4):
    e(f"ds_write_b128 v3, {vr(ACC+4*r)} offset:{L_RED-2048+32*r}")
fullexec()
e.flush()
e.label("L_att_final")
with Guard():
    e("s_waitcnt lgkmcnt(0)")
    e("s_barrier")
e("s_cbranch_execz L_att_fin_a")
e("s_cmp_eq_u32 s3, 2")
e("s_cbranch_scc1 L_att_fin_ml")
e("s_cmp_gt_u32 s3, 1")
e("s_cbranch_scc1 L_done")
e.label("L_att_fin_a")
e("s_lshl_b32 s46, s3, 10")
e("v_add_u32 v3, s46, v2")
for w in range(7):
    e(f"ds_read_b128 {vr(DA+4*w)}, v3 offset:{L_RED+2048*w}")
e(f"""
v_lshrrev_b32 v14, 9, v3
s_lshl_b32 s46, s51, 2
v_add_u32 v14, s46, v14
s_movk_i32 s46, 14336
v_mul_lo_u32 v14, v14, s46
v_and_b32 v15, 0x1ff, v3
v_add_u32 v14, v14, v15
s_lshl_b32 s46, s52, 9
s_add_u32 s46, s46, 0x{O_IN:x}
v_add_u32 v14, s46, v14
s_waitcnt lgkmcnt(0)
""")
for k in range(4):
    e(f"v_add_f32 v{DA+k}, v{DA+k}, v{DA+4+k}")
    e(f"v_add_f32 v{DA+8+k}, v{DA+8+k}, v{DA+12+k}")
    e(f"v_add_f32 v{DA+16+k}, v{DA+16+k}, v{DA+20+k}")
for k in range(4):
    e(f"v_add_f32 v{DA+k}, v{DA+k}, v{DA+8+k}")
    e(f"v_add_f32 v{DA+16+k}, v{DA+16+k}, v{DA+24+k}")
for k in range(4):
    e(f"v_add_f32 v{DA+k}, v{DA+k}, v{DA+16+k}")
with Guard():
    e(f"global_store_dwordx4 v14, {vr(DA)}, s[34:35] sc1")
    stamp(5)
    e("s_branch L_done")
e.label("L_att_fin_ml")
e(f"""
v_and_b32 v3, 3, v0
v_lshlrev_b32 v3, 5, v3
ds_read_b128 {vr(DA)}, v3 offset:{L_LP}
ds_read_b128 {vr(DA+4)}, v3 offset:{L_LP+16}
v_and_b32 v3, 3, v0
s_lshl_b32 s46, s51, 2
v_add_u32 v3, s46, v3
v_lshlrev_b32 v3, 8, v3
s_lshl_b32 s46, s52, 3
s_add_u32 s46, s46, 0x{ML_IN:x}
v_add_u32 v3, s46, v3
s_waitcnt lgkmcnt(0)
v_add_f32 v15, v{DA}, v{DA+1}
v_add_f32 v{DA+2}, v{DA+2}, v{DA+3}
v_add_f32 v{DA+4}, v{DA+4}, v{DA+5}
v_add_f32 v15, v15, v{DA+2}
v_add_f32 v{DA+4}, v{DA+4}, v{DA+6}
v_add_f32 v15, v15, v{DA+4}
""")
with Guard():
    setexec(0xf, 0)
    e("global_store_dwordx2 v3, v[14:15], s[34:35] sc1")
    e("s_branch L_done")
if OPT["dry"]:
    e("s_branch L_att_dry_ret")

C_C = 4; C_X = 8; C_XJ = 12; C_FL = 13
C_SA = 16; C_CA = 48; C_RS = 80; C_WQ = 112; C_SP = 176
C_ONES = 180; C_H = 184; C_ACC = 192; C_SLO = 208; C_SHI = 216; C_T = 224
e.label("L_chain")
e(f"""
v_mov_b32 v{C_ONES}, -1
v_mov_b32 v{C_ONES+1}, -1
v_mov_b32 v{C_ONES+2}, -1
v_mov_b32 v{C_ONES+3}, -1
s_cmp_lg_u32 s2, 0
s_cbranch_scc1 L_ch_noclr
global_store_dwordx4 v2, {vr(C_ONES)}, s[34:35] offset:{H_IN} sc1
s_waitcnt vmcnt(0)
v_mov_b32 v3, 1
s_mov_b64 exec, 1
global_store_dword v1, v3, s[32:33] sc1
s_mov_b64 exec, -1
L_ch_noclr:
global_load_dwordx4 {vr(C_C)}, v2, s[26:27]
global_load_dwordx4 {vr(C_X)}, v2, s[8:9]
s_mov_b32 s46, 49152
v_mul_lo_u32 v14, v0, s46
s_lshl_b32 s46, s50, 4
s_add_u32 s46, s46, 2048
v_add_u32 v15, s46, v14
s_cmp_ge_u32 s5, 8
s_cbranch_scc1 L_ch_noM1
s_lshl_b32 s46, s4, 3
s_add_u32 s56, s46, s5
s_lshl_b32 s46, s56, 4
v_add_u32 v14, s46, v14
v_bfe_u32 v3, v0, 2, 3
v_lshlrev_b32 v3, 1, v3
v_add_u32 v3, s46, v3
global_load_ushort v{C_XJ}, v3, s[8:9]
s_mov_b32 s44, s28
s_mov_b32 s45, s29
""")
for i in range(8):
    e(f"global_load_dwordx4 {vr(C_SA+4*i)}, v14, s[44:45] {NTS}")
    e(f"global_load_dwordx4 {vr(C_CA+4*i)}, v14, s[44:45] offset:1024 {NTS}")
    if i < 7:
        e("s_add_u32 s44, s44, 6144")
        e("s_addc_u32 s45, s45, 0")
e(f"""
s_mul_i32 s46, s2, {CLR_PER}
s_add_u32 s46, s46, 0x{CLR_BASE:x}
v_add_u32 v3, s46, v2
""")
for k in range(10):
    if k in (4, 8): e("v_add_u32 v3, 0x1000, v3")
    e(f"global_store_dwordx4 v3, {vr(C_ONES)}, s[34:35] offset:{(k%4)*1024} sc1")
e.label("L_ch_noM1")
e(f"global_load_dword v{C_FL}, v1, s[32:33] sc1")
e(f"""
s_cmp_lg_u32 s4, 7
s_cbranch_scc1 L_ch_noxcc
s_getreg_b32 s46, hwreg(HW_REG_XCC_ID)
s_and_b32 s46, s46, 15
s_add_u32 s46, s46, 1
v_mov_b32 v3, s46
v_mov_b32 v14, s53
s_mov_b64 exec, 1
global_store_byte v14, v3, s[32:33] offset:128 sc1
s_mov_b64 exec, -1
L_ch_noxcc:
v_lshrrev_b32 v14, 1, v0
v_lshlrev_b32 v14, 17, v14
v_and_b32 v3, 1, v0
v_lshl_add_u32 v14, v3, 4, v14
s_lshl_b32 s46, s50, 5
v_add_u32 v14, s46, v14
s_mov_b32 s44, s14
s_mov_b32 s45, s15
""")
for i in range(16):
    e(f"global_load_dwordx4 {vr(C_WQ+4*i)}, v14, s[44:45] {NTS}")
    if i < 15:
        e("s_add_u32 s44, s44, 8192")
        e("s_addc_u32 s45, s45, 0")
e("s_mov_b32 s44, s28")
e("s_mov_b32 s45, s29")
for i in range(8):
    e(f"global_load_dwordx4 {vr(C_RS+4*i)}, v15, s[44:45] {NTS}")
    if i < 7:
        e("s_add_u32 s44, s44, 6144")
        e("s_addc_u32 s45, s45, 0")
e("s_waitcnt vmcnt(24)")
stamp(1)
e(f"s_mov_b32 s46, 0x{LOG2E ^ 0x80000000:x}")
for k in range(4):
    a, b = C_T + 2 * k, C_T + 2 * k + 1
    e(f"v_lshlrev_b32 v{C_SLO+2*k}, 16, v{C_C+k}")
    e(f"v_and_b32 v{C_SLO+2*k+1}, 0xffff0000, v{C_C+k}")
for k in range(8):
    e(f"v_mul_f32 v{C_T+k}, s46, v{C_SLO+k}")
for k in range(8):
    e(f"v_exp_f32 v{C_T+k}, v{C_T+k}")
for k in range(8):
    e(f"v_add_f32 v{C_T+k}, 1.0, v{C_T+k}")
for k in range(8):
    e(f"v_rcp_f32 v{C_T+k}, v{C_T+k}")
for k in range(8):
    e(f"v_mul_f32 v{C_T+k}, v{C_T+k}, v{C_SLO+k}")
for k in range(8):
    e(f"v_cvt_pk_bf16_f32 v{C_T+k}, v{C_T+k}, v{C_T+k}")
for k in range(8):
    e(f"v_and_b32 v{C_SLO+k}, 0xffff, v{C_T+k}")
    e(f"v_and_b32 v{C_SHI+k}, 0xffff0000, v{C_T+k}")

def gemv8(tile, acc):
    for i in range(8):
        for r in range(4):
            for hf, S in ((0, C_SLO), (1, C_SHI)):
                a = acc + 2 * r + hf
                c = "0" if i == 0 else f"v{a}"
                e(f"v_dot2_f32_bf16 v{a}, v{tile+4*i+r}, v{S+i}, {c}")

e.flush()
e("s_cmp_ge_u32 s5, 8")
e("s_cbranch_scc1 L_ch_noM2")
gemv8(C_SA, C_ACC)
gemv8(C_CA, C_ACC + 8)
ln_stats(C_X, C_T)
for i in range(8): red_T32(C_ACC + i, C_ACC + 8 + i)
for i in range(4): red_T16(C_ACC + i, C_ACC + 4 + i)
red_T8(C_T, C_ACC, C_ACC + 2)
red_T8(C_T + 1, C_ACC + 1, C_ACC + 3)
red_T4(C_T + 2, C_T, C_T + 1)
red_plain("v_add_f32", C_T + 2, C_T, [1, 0])
Z = C_T + 2
rnd_bf16(f"v{Z}", f"v{Z}")
e(f"v_mov_b32 v{Z+1}, v{Z}")
e(f"v_permlane32_swap_b32 v{Z}, v{Z+1}")
e(f"v_add_f32 v{Z+1}, 1.0, v{Z+1}")
rnd_bf16(f"v{Z+1}", f"v{Z+1}")
e(f"v_lshlrev_b32 v{C_XJ}, 16, v{C_XJ}")
e(f"v_subrev_f32 v{C_XJ}, s64, v{C_XJ}")
rnd_bf16(f"v{C_XJ}", f"v{C_XJ}")
e(f"v_mul_f32 v{C_XJ}, s65, v{C_XJ}")
rnd_bf16(f"v{C_XJ}", f"v{C_XJ}")
e(f"v_mul_f32 v{C_XJ}, v{C_XJ}, v{Z+1}")
rnd_bf16(f"v{C_XJ}", f"v{C_XJ}")
e(f"v_add_f32 v{C_XJ}, v{C_XJ}, v{Z}")
e(f"v_mov_b32_dpp v{Z}, v{C_XJ} {ror(12)}")
e(f"v_cvt_pk_bf16_f32 v{Z}, v{C_XJ}, v{Z}")
e(f"v_lshrrev_b32 v3, 3, v0")
e(f"v_lshlrev_b32 v3, 2, v3")
e(f"s_lshl_b32 s46, s56, 4")
e(f"v_add_u32 v3, s46, v3")
e.flush()
e.label("L_ch_noM2")
e(f"v_readfirstlane_b32 s46, v{C_FL}")
e("s_cmp_lg_u32 s46, 0")
e("s_cbranch_scc1 L_ch_flagok")
lg = poll_begin()
e(f"global_load_dword v{C_FL}, v1, s[32:33] sc1")
e("s_waitcnt vmcnt(0)")
e(f"v_cmp_eq_u32 vcc, 0, v{C_FL}")
e(f"s_cbranch_vccnz {lg[0]}")
e.label(lg[1])
e.label("L_ch_flagok")
e("s_cmp_ge_u32 s5, 8")
e("s_cbranch_scc1 L_ch_noM3")
e("s_mov_b32 exec_lo, 0x01010101")
e("s_mov_b32 exec_hi, 0")
e(f"global_store_dword v3, v{Z}, s[34:35] offset:{H_IN} sc1")
e("s_mov_b64 exec, -1")
e.label("L_ch_noM3")
stamp(2)
e("s_waitcnt vmcnt(0)")
wq_lo = {}; wq_hi = {}
spare = C_SP
for k in range(8):
    for r in range(4):
        A_ = C_WQ + 4 * (2 * k) + r; B_ = C_WQ + 4 * (2 * k + 1) + r
        e(f"v_perm_b32 v{spare}, v{B_}, v{A_}, s48")
        e(f"v_perm_b32 v{B_}, v{B_}, v{A_}, s49")
        wq_lo[(k, r)] = spare; wq_hi[(k, r)] = B_
        spare = A_
e("v_lshrrev_b32 v3, 1, v0")
e("v_lshlrev_b32 v3, 5, v3")
lg = poll_begin()
e(f"global_load_dwordx4 {vr(C_H)}, v3, s[34:35] offset:{H_IN} sc1")
e(f"global_load_dwordx4 {vr(C_H+4)}, v3, s[34:35] offset:{H_IN+16} sc1")
e("s_waitcnt vmcnt(0)")
poll_end(lg, [f"v{C_H+k}" for k in range(8)], "v14")
stamp(3)
for k in range(8):
    for r in range(4):
        for hf, tab in ((0, wq_lo), (1, wq_hi)):
            a = C_ACC + 2 * r + hf
            c = "0" if k == 0 else f"v{a}"
            e(f"v_dot2_f32_bf16 v{a}, v{tab[(k,r)]}, v{C_H+k}, {c}")
for i in range(4): red_T32(C_ACC + i, C_ACC + 4 + i)
for i in range(2): red_T16(C_ACC + i, C_ACC + 2 + i)
red_T8(C_T, C_ACC, C_ACC + 1)
red_T4(C_T + 1, C_T, C_T)
red_plain("v_add_f32", C_T + 1, C_T, [1])
e(f"v_mov_b32_dpp v{C_T}, v{C_T+1} {ror(8)}")
e(f"v_cvt_pk_bf16_f32 v{C_T}, v{C_T+1}, v{C_T}")
e(f"""
v_and_b32 v3, 1, v0
v_lshlrev_b32 v3, 4, v3
v_lshrrev_b32 v14, 4, v0
v_lshl_add_u32 v3, v14, 2, v3
s_lshl_b32 s46, s50, 5
s_add_u32 s46, s46, 0x{Q_IN:x}
v_add_u32 v3, s46, v3
s_mov_b32 exec_lo, 0x00030003
s_mov_b32 exec_hi, 0x00030003
global_store_dword v3, v{C_T}, s[34:35] sc1
s_mov_b64 exec, -1
""")
stamp(4)
e("s_cmp_lg_u32 s4, 7")
e("s_cbranch_scc1 L_ch_nt1")
e("v_mov_b32 v3, 1")
e(f"ds_write_b32 v1, v3 offset:{L_FLAG}")
e.label("L_ch_nt1")
gemv8(C_RS, C_ACC)
for i in range(4): red_T32(C_ACC + i, C_ACC + 4 + i)
for i in range(2): red_T16(C_ACC + i, C_ACC + 2 + i)
red_T8(C_T, C_ACC, C_ACC + 1)
red_T4(C_T + 1, C_T, C_T)
red_plain("v_add_f32", C_T + 1, C_T, [1, 0])
e(f"v_mov_b32_dpp v{C_T}, v{C_T+1} {ror(8)}")
e(f"v_cvt_pk_bf16_f32 v{C_T}, v{C_T+1}, v{C_T}")
e(f"""
v_lshrrev_b32 v3, 4, v0
v_lshlrev_b32 v3, 2, v3
s_lshl_b32 s46, s50, 4
s_add_u32 s46, s46, 0x{MOD_IN:x}
v_add_u32 v3, s46, v3
s_mov_b32 exec_lo, 0x00010001
s_mov_b32 exec_hi, 0x00010001
global_store_dword v3, v{C_T}, s[34:35] sc1
s_mov_b64 exec, -1
s_cmp_eq_u32 s4, 7
s_cbranch_scc1 L_tail_stream
""")
e(f"""
v_and_b32 v3, 3, v0
v_lshlrev_b32 v3, 8, v3
v_lshrrev_b32 v14, 2, v0
v_lshl_add_u32 v3, v14, 4, v3
s_lshl_b32 s46, s51, 10
s_add_u32 s46, s46, 0x{Q_IN:x}
v_add_u32 v3, s46, v3
""")
lg = poll_begin()
e(f"global_load_dwordx4 {vr(QB)}, v3, s[34:35] sc1")
e("s_waitcnt vmcnt(0)")
poll_end(lg, [f"v{QB+k}" for k in range(4)], "v14")
e(f"ds_write_b128 v2, {vr(QB)} offset:{L_QB}")
e("v_mov_b32 v3, 1")
e(f"ds_write_b32 v1, v3 offset:{L_FLAG}")
stamp(5)
e("s_waitcnt lgkmcnt(0)")
e("s_barrier")
e("s_barrier")
e("s_branch L_att_final")

T_WO = 16; T_G = 80; T_U = 112; T_DN = 144; T_SP = 172
T_CB = 176; T_SB = 180; T_GA = 184; T_GB = 185; T_X = 186; T_X1 = 187
T_PO = 188; T_PO2 = 189; T_PM = 190; T_A2 = 191; T_XF = 192; T_XO = 193; T_R2W = 194; T_R2R = 195; T_ST = 196; T_OUT = 197
T_O = 200; T_ML = 208; T_ACC = 212; T_T = 228
e.label("L_tail_stream")
e(f"""
s_lshr_b32 s46, s3, 1
s_lshl_b32 s46, s46, 5
s_and_b32 s54, s3, 1
s_lshl_b32 s54, s54, 2
s_add_u32 s46, s46, s54
s_lshl_b32 s54, s53, 7
s_add_u32 s46, s46, s54
s_lshl_b32 s46, s46, 10
v_add_u32 v3, s46, v2
""")
tgrp = [0]
def tthrottle(n):
    tgrp[0] += n
    if tgrp[0] >= 8: throttle()

for n in range(16):
    drel = 8 * (n & 3) + 2 * (n >> 3) + ((n >> 2) & 1)
    off = drel * 1024
    e(f"s_add_u32 s44, s16, {off & ~0xfff}")
    e("s_addc_u32 s45, s17, 0")
    e(f"global_load_dwordx4 {vr(T_WO+4*n)}, v3, s[44:45] offset:{off & 0xfff} {NT}")
    if n % 4 == 3: tthrottle(4)
e(f"""
v_lshrrev_b32 v14, 3, v0
v_lshlrev_b32 v14, 3, v14
s_lshl_b32 s46, s3, 6
v_add_u32 v14, s46, v14
s_movk_i32 s46, 3584
v_mul_lo_u32 v14, v14, s46
v_and_b32 v15, 7, v0
v_min_u32 v15, 6, v15
v_lshl_add_u32 v14, v15, 4, v14
s_mul_i32 s46, s53, 112
v_add_u32 v14, s46, v14
""")
for mat, (ptr, tile) in enumerate(((20, T_G), (22, T_U))):
    for i in range(8):
        e(f"s_add_u32 s44, s{ptr}, {i*3584}")
        e(f"s_addc_u32 s45, s{ptr+1}, 0")
        e(f"global_load_dwordx4 {vr(tile+4*i)}, v14, s[44:45] {NT}")
        if i % 4 == 3: tthrottle(4)
e(f"""
s_mul_i32 s46, s53, 56
s_mul_i32 s54, s3, 7
s_add_u32 s46, s46, s54
s_lshl_b32 s46, s46, 10
v_add_u32 v3, s46, v2
""")
for i in range(7):
    off = i * 1024
    e(f"s_add_u32 s44, s24, {off & ~0xfff}")
    e("s_addc_u32 s45, s25, 0")
    e(f"global_load_dwordx4 {vr(T_DN+4*i)}, v3, s[44:45] offset:{off & 0xfff} {NT}")
e(f"""
v_lshrrev_b32 v14, 2, v0
v_and_b32 v15, 3, v0
v_lshlrev_b32 v{T_PO}, 9, v14
v_lshl_add_u32 v{T_PO}, v15, 4, v{T_PO}
s_mul_i32 s46, s53, 14336
s_lshl_b32 s54, s3, 6
s_add_u32 s46, s46, s54
s_add_u32 s46, s46, 0x{O_IN:x}
v_add_u32 v{T_PO}, s46, v{T_PO}
v_add_u32 v{T_PO2}, 0x2000, v{T_PO}
s_lshl_b32 s46, s53, 8
s_add_u32 s46, s46, 0x{ML_IN:x}
v_lshlrev_b32 v{T_PM}, 3, v14
v_add_u32 v{T_PM}, s46, v{T_PM}
s_lshl_b32 s46, s53, 11
v_add_u32 v{T_A2}, s46, v2
v_add_u32 v{T_XF}, 0x{X1_IN:x}, v2
v_lshrrev_b32 v14, 3, v0
v_lshlrev_b32 v14, 4, v14
s_lshl_b32 s46, s3, 7
v_add_u32 v14, s46, v14
v_add_u32 v{T_XO}, 0x{X1_IN:x}, v14
v_add_u32 v14, 0x{MOD_IN:x}, v14
""")
e(f"""
v_lshrrev_b32 v15, 5, v0
v_lshlrev_b32 v{T_R2W}, 8, v15
v_and_b32 v15, 7, v0
v_lshl_add_u32 v{T_R2W}, v15, 5, v{T_R2W}
v_bfe_u32 v15, v0, 3, 2
v_lshl_add_u32 v{T_R2W}, v15, 3, v{T_R2W}
s_lshl_b32 s46, s3, 9
v_add_u32 v{T_R2W}, s46, v{T_R2W}
v_lshrrev_b32 v15, 3, v0
v_lshlrev_b32 v{T_R2R}, 9, v15
v_and_b32 v15, 7, v0
v_lshl_add_u32 v{T_R2R}, v15, 2, v{T_R2R}
s_mul_i32 s46, s3, 28
v_add_u32 v{T_R2R}, s46, v{T_R2R}
""")
e(f"""
s_lshl_b32 s46, s3, 6
v_add_u32 v15, s46, v0
v_lshrrev_b32 v{T_ST}, 2, v15
v_lshlrev_b32 v{T_ST}, 11, v{T_ST}
v_and_b32 v15, 3, v15
v_lshl_add_u32 v{T_ST}, v15, 4, v{T_ST}
s_lshl_b32 s46, s53, 6
v_add_u32 v{T_ST}, s46, v{T_ST}
v_and_b32 v15, 3, v0
v_lshlrev_b32 v{T_OUT}, 3, v15
v_lshrrev_b32 v15, 5, v0
v_lshl_add_u32 v{T_OUT}, v15, 2, v{T_OUT}
s_lshl_b32 s46, s53, 5
v_add_u32 v{T_OUT}, s46, v{T_OUT}
v_add_u32 v15, 0x{MOD_IN:x}, v{T_OUT}
global_load_dword v{T_X}, v{T_OUT}, s[8:9]
""")
if OPT["dry"]:
    l = e.newlab("Ld")
    e("s_cmp_lg_u32 s3, 1")
    e(f"s_cbranch_scc1 {l}")
    e("s_mov_b64 s[6:7], 0")
    e("s_mov_b64 exec, 0")
    e("s_branch L_tail_compute")
    e.label("L_tail_dry_ret")
    e("s_mov_b64 s[6:7], -1")
    e("s_mov_b64 exec, -1")
    e.label(l)
lg = poll_begin()
e("s_sleep 2")
e(f"ds_read_b32 v{T_T}, v1 offset:{L_FLAG}")
e("s_waitcnt lgkmcnt(0)")
e(f"v_cmp_eq_u32 vcc, 0, v{T_T}")
e(f"s_cbranch_vccnz {lg[0]}")
e.label(lg[1])
lg = poll_begin()
e("s_sleep 4")
e(f"global_load_dwordx4 {vr(T_SB)}, v14, s[34:35] offset:1024 sc1")
e(f"global_load_dwordx4 {vr(T_CB)}, v14, s[34:35] offset:2048 sc1")
e(f"global_load_dword v{T_GA}, v15, s[34:35] sc1")
e(f"global_load_dword v{T_GB}, v15, s[34:35] offset:3072 sc1")
e("s_waitcnt vmcnt(0)")
poll_end(lg, [f"v{T_SB+k}" for k in range(4)] + [f"v{T_CB+k}" for k in range(4)] + [f"v{T_GA}", f"v{T_GB}"], f"v{T_T}")
e(f"v_bfe_u32 v15, v0, 4, 1")
e(f"v_lshlrev_b32 v15, 4, v15")
for r_ in (T_GA, T_GB, T_X):
    e(f"v_lshrrev_b32 v{r_}, v15, v{r_}")
    e(f"v_lshlrev_b32 v{r_}, 16, v{r_}")
for k in range(4):
    e(f"v_lshlrev_b32 v{T_T}, 16, v{T_CB+k}")
    e(f"v_and_b32 v{T_T+1}, 0xffff0000, v{T_CB+k}")
    e(f"v_add_f32 v{T_T}, 1.0, v{T_T}")
    e(f"v_add_f32 v{T_T+1}, 1.0, v{T_T+1}")
    e(f"v_cvt_pk_bf16_f32 v{T_CB+k}, v{T_T}, v{T_T+1}")
if not OPT["force_global"]:
    e("s_getreg_b32 s46, hwreg(HW_REG_XCC_ID)")
    e("s_and_b32 s46, s46, 15")
    e("s_add_u32 s46, s46, 1")
    e("s_mov_b32 exec_hi, 0")
    lg = poll_begin()
    e(f"global_load_ubyte v{T_T}, v0, s[32:33] offset:128 sc1")
    e("s_waitcnt vmcnt(0)")
    e(f"v_cmp_eq_u32 vcc, 0, v{T_T}")
    e(f"s_cbranch_vccnz {lg[0]}")
    e.label(lg[1])
    e(f"v_cmp_ne_u32 vcc, s46, v{T_T}")
    e("s_mov_b64 exec, -1")
    e("s_cmp_eq_u64 vcc, 0")
    e("s_cselect_b32 s62, 1, 0")
spare = T_SP
def interleave(tile, npairs):
    global spare
    lo = {}; hi = {}
    for k in range(npairs):
        for r in range(4):
            A_ = tile + 4 * (2 * k) + r; B_ = tile + 4 * (2 * k + 1) + r
            e(f"v_perm_b32 v{spare}, v{B_}, v{A_}, s48")
            e(f"v_perm_b32 v{B_}, v{B_}, v{A_}, s49")
            lo[(k, r)] = spare; hi[(k, r)] = B_
            spare = A_
    return lo, hi
wo_lo, wo_hi = interleave(T_WO, 8)
g_lo, g_hi = interleave(T_G, 4)
u_lo, u_hi = interleave(T_U, 4)
d_lo, d_hi = interleave(T_DN, 3)
for k in range(4): e(f"v_mov_b32 v{T_O+4+k}, 0")
e(f"v_mov_b32 v{T_ML+2}, 0xff800000")
e(f"v_mov_b32 v{T_ML+3}, 0")
stamp(1)

e.label("L_tail_compute")
with Guard():
    lg = poll_begin()
    e(f"global_load_dwordx2 v[{T_ML}:{T_ML+1}], v{T_PM}, s[34:35] sc1")
    e(f"global_load_dwordx4 {vr(T_O)}, v{T_PO}, s[34:35] sc1")
    e("s_mov_b32 exec_hi, 0xffff")
    e(f"global_load_dwordx2 v[{T_ML+2}:{T_ML+3}], v{T_PM}, s[34:35] offset:128 sc1")
    e(f"global_load_dwordx4 {vr(T_O+4)}, v{T_PO2}, s[34:35] sc1")
    e("s_mov_b64 exec, -1")
    e("s_waitcnt vmcnt(0)")
    poll_end(lg, [f"v{T_O+k}" for k in range(8)] + [f"v{T_ML+k}" for k in range(4)], f"v{T_T}")
stamp(2)
M_ = T_T; W0 = T_T + 1; W1 = T_T + 2; TT = T_T + 3
e(f"v_max_f32 v{M_}, v{T_ML}, v{T_ML+2}")
red_plain("v_max_f32", M_, TT, [3, 2, 4, 5])
e(f"s_mov_b32 s46, 0x{LOG2E:x}")
e(f"v_sub_f32 v{W0}, v{T_ML}, v{M_}")
e(f"v_sub_f32 v{W1}, v{T_ML+2}, v{M_}")
e(f"v_mul_f32 v{W0}, s46, v{W0}")
e(f"v_mul_f32 v{W1}, s46, v{W1}")
e(f"v_exp_f32 v{W0}, v{W0}")
e(f"v_exp_f32 v{W1}, v{W1}")
e(f"v_mul_f32 v{M_}, v{W0}, v{T_ML+1}")
for k in range(4): e(f"v_mul_f32 v{T_O+k}, v{W0}, v{T_O+k}")
e(f"v_fmac_f32 v{M_}, v{W1}, v{T_ML+3}")
for k in range(4): e(f"v_fmac_f32 v{T_O+k}, v{W1}, v{T_O+4+k}")
red_T32(T_O, T_O + 2); red_T32(T_O + 1, T_O + 3)
red_T16(T_O, T_O + 1)
red_plain("v_add_f32", M_, TT, [3, 2, 4, 5])
red_plain("v_add_f32", T_O, TT, [3, 2])
e(f"v_rcp_f32 v{W0}, v{M_}")
e(f"v_fma_f32 v{W1}, -v{M_}, v{W0}, 1.0")
e(f"v_fma_f32 v{W0}, v{W1}, v{W0}, v{W0}")
e(f"v_mul_f32 v{T_O}, v{T_O}, v{W0}")
e(f"v_mov_b32 v{TT}, v{T_O}")
e(f"v_permlane16_swap_b32 v{T_O}, v{TT}")
e(f"v_cvt_pk_bf16_f32 v{T_O}, v{T_O}, v{TT}")
for k in range(8):
    e(f"v_readlane_b32 s{64+k}, v{T_O}, {(k>>1) + 32*(k&1)}")
for k in range(8):
    for r in range(4):
        for hf, tab in ((0, wo_lo), (1, wo_hi)):
            a = T_ACC + 2 * r + hf
            c = "0" if k == 0 else f"v{a}"
            e(f"v_dot2_f32_bf16 v{a}, v{tab[(k,r)]}, s{64+k}, {c}")

def cu_reduce_store(inbox, tagl):
    e(f"s_lshl_b32 s46, s3, 11")
    e(f"v_lshlrev_b32 v{TT}, 5, v0")
    e(f"v_add_u32 v{TT}, s46, v{TT}")
    e(f"ds_write_b128 v{TT}, {vr(T_ACC)} offset:{L_RED}")
    e(f"ds_write_b128 v{TT}, {vr(T_ACC+4)} offset:{L_RED+16}")
    with Guard():
        e("s_waitcnt lgkmcnt(0)")
        e("s_barrier")
        e("s_cmp_gt_u32 s3, 1")
        e(f"s_cbranch_scc1 {tagl}")
    e("s_lshl_b32 s46, s3, 10")
    e(f"v_add_u32 v{TT}, s46, v2")
    B = T_T + 4 - 4
    regs = [200, 204, 208, 212, 216, 220, 224, 232]
    for w in range(8):
        e(f"ds_read_b128 {vr(regs[w])}, v{TT} offset:{L_RED+2048*w}")
    e("s_waitcnt lgkmcnt(0)")
    for a, b in ((0, 1), (2, 3), (4, 5), (6, 7), (0, 2), (4, 6), (0, 4)):
        for k in range(4):
            e(f"v_add_f32 v{regs[a]+k}, v{regs[a]+k}, v{regs[b]+k}")
    e(f"v_add_u32 v{TT}, 0x{inbox:x}, v{T_ST}")
    with Guard():
        store_mode(f"global_store_dwordx4 v{TT}, {vr(regs[0])}, s[34:35]")

def gather16(inbox, dst):
    e(f"v_add_u32 v{TT}, 0x{inbox:x}, v{T_A2}")
    with Guard():
        lg = poll_begin()
        e(f"global_load_dwordx4 {vr(T_O)}, v{TT}, s[34:35] sc1")
        e(f"global_load_dwordx4 {vr(T_O+4)}, v{TT}, s[34:35] offset:1024 sc1")
        e("s_waitcnt vmcnt(0)")
        poll_end(lg, [f"v{T_O+k}" for k in range(8)], f"v{T_T}")
    for k in range(4): e(f"v_add_f32 v{T_O+k}, v{T_O+k}, v{T_O+4+k}")
    red_T32(T_O, T_O + 2); red_T32(T_O + 1, T_O + 3)
    red_T16(T_O, T_O + 1)
    red_plain("v_add_f32", T_O, TT, [3, 2])
    rnd_bf16(f"v{dst}", f"v{T_O}")

cu_reduce_store(A_IN, "L_t_s3")
stamp(3)
with Guard():
    e("s_cmp_lg_u32 s3, 0")
    e("s_cbranch_scc1 L_t_s3")
gather16(A_IN, T_O)
e(f"v_mul_f32 v{T_O}, v{T_O}, v{T_GA}")
rnd_bf16(f"v{T_O}", f"v{T_O}")
e(f"v_add_f32 v{T_O}, v{T_O}, v{T_X}")
rnd_bf16(f"v{T_X1}", f"v{T_O}")
e(f"v_mov_b32 v{TT}, v{T_X1}")
e(f"v_mov_b32 v{T_O}, v{T_X1}")
e(f"v_permlane16_swap_b32 v{T_O}, v{TT}")
e(f"v_cvt_pk_bf16_f32 v{T_O}, v{T_O}, v{TT}")
e(f"v_add_u32 v{TT}, 0x{X1_IN:x}, v{T_OUT}")
with Guard():
    setexec(0xf, 0xf)
    store_mode(f"global_store_dword v{TT}, v{T_O}, s[34:35]")
    fullexec()
stamp(4)
e.flush()
e.label("L_t_s3")
XF = T_O; XO = T_O + 4
with Guard():
    lg = poll_begin()
    e(f"global_load_dwordx4 {vr(XF)}, v{T_XF}, s[34:35] sc1")
    e(f"global_load_dwordx4 {vr(XO)}, v{T_XO}, s[34:35] sc1")
    e("s_waitcnt vmcnt(0)")
    poll_end(lg, [f"v{T_O+k}" for k in range(8)], f"v{T_T}")
stamp(5)
ln_stats(XF, T_T)
H2 = T_ML
for k in range(4):
    a, b = T_T + 4 + 2 * k, T_T + 5 + 2 * k
    e(f"v_lshlrev_b32 v{a}, 16, v{XO+k}")
    e(f"v_and_b32 v{b}, 0xffff0000, v{XO+k}")
for k in range(4):
    a, b = T_T + 4 + 2 * k, T_T + 5 + 2 * k
    e(f"v_subrev_f32 v{a}, s64, v{a}")
    e(f"v_subrev_f32 v{b}, s64, v{b}")
def rnd_pair(a, b):
    e(f"v_cvt_pk_bf16_f32 v{b}, v{a}, v{b}")
    e(f"v_lshlrev_b32 v{a}, 16, v{b}")
    e(f"v_and_b32 v{b}, 0xffff0000, v{b}")
for k in range(4): rnd_pair(T_T + 4 + 2 * k, T_T + 5 + 2 * k)
for k in range(8): e(f"v_mul_f32 v{T_T+4+k}, s65, v{T_T+4+k}")
for k in range(4): rnd_pair(T_T + 4 + 2 * k, T_T + 5 + 2 * k)
for k in range(4):
    a, b = T_T + 4 + 2 * k, T_T + 5 + 2 * k
    e(f"v_lshlrev_b32 v{T_T}, 16, v{T_CB+k}")
    e(f"v_and_b32 v{T_T+1}, 0xffff0000, v{T_CB+k}")
    e(f"v_mul_f32 v{a}, v{a}, v{T_T}")
    e(f"v_mul_f32 v{b}, v{b}, v{T_T+1}")
for k in range(4): rnd_pair(T_T + 4 + 2 * k, T_T + 5 + 2 * k)
for k in range(4):
    a, b = T_T + 4 + 2 * k, T_T + 5 + 2 * k
    e(f"v_lshlrev_b32 v{T_T}, 16, v{T_SB+k}")
    e(f"v_and_b32 v{T_T+1}, 0xffff0000, v{T_SB+k}")
    e(f"v_add_f32 v{a}, v{a}, v{T_T}")
    e(f"v_add_f32 v{b}, v{b}, v{T_T+1}")
    e(f"v_cvt_pk_bf16_f32 v{H2+k}, v{a}, v{b}")
for k in range(4):
    for mat, (lo, hi) in enumerate(((g_lo, g_hi), (u_lo, u_hi))):
        for r in range(4):
            for hf, tab in ((0, lo), (1, hi)):
                a = T_ACC + 8 * mat + 2 * r + hf
                c = "0" if k == 0 else f"v{a}"
                e(f"v_dot2_f32_bf16 v{a}, v{tab[(k,r)]}, v{H2+k}, {c}")
for i in range(8): red_T32(T_ACC + i, T_ACC + 8 + i)
for i in range(4): red_T16(T_ACC + i, T_ACC + 4 + i)
red_T8(T_T, T_ACC, T_ACC + 2)
red_T8(T_T + 1, T_ACC + 1, T_ACC + 3)
e(f"ds_write_b64 v{T_R2W}, v[{T_T}:{T_T+1}] offset:{L_RED2}")
with Guard():
    e("s_waitcnt lgkmcnt(0)")
    e("s_barrier")
G_ = T_T; U_ = T_T + 1
e(f"ds_read_b32 v{G_}, v{T_R2R} offset:{L_RED2}")
e(f"ds_read_b32 v{U_}, v{T_R2R} offset:{L_RED2+256}")
e("s_waitcnt lgkmcnt(0)")
red_T32(G_, U_)
red_plain("v_add_f32", G_, TT, [4, 3])
rnd_bf16(f"v{G_}", f"v{G_}")
e(f"v_mov_b32 v{U_}, v{G_}")
e(f"v_permlane32_swap_b32 v{G_}, v{U_}")
e(f"v_mul_f32 v{TT}, v{G_}, v{G_}")
e(f"v_mov_b32 v{TT+1}, 0x3d372713")
e(f"v_fma_f32 v{TT}, v{TT}, v{TT+1}, 1.0")
e(f"v_mul_f32 v{TT}, v{TT}, v{G_}")
e(f"v_mul_f32 v{TT}, 0xc0135761, v{TT}")
e(f"v_exp_f32 v{TT}, v{TT}")
e(f"v_add_f32 v{TT}, 1.0, v{TT}")
e(f"v_rcp_f32 v{TT}, v{TT}")
e(f"v_mul_f32 v{G_}, v{G_}, v{TT}")
rnd_bf16(f"v{G_}", f"v{G_}")
e(f"v_mul_f32 v{G_}, v{G_}, v{U_}")
e(f"v_mov_b32_dpp v{U_}, v{G_} quad_perm:[1,1,3,3] {DPPALL}")
e(f"v_cvt_pk_bf16_f32 v{G_}, v{G_}, v{U_}")
for k in range(4): e(f"v_readlane_b32 s{64+k}, v{G_}, {2*k}")
e("s_and_b32 s67, s67, 0xffff")
e("s_lshl_b32 s68, s67, 16")
for k in range(3):
    for r in range(4):
        for hf, tab in ((0, d_lo), (1, d_hi)):
            a = T_ACC + 2 * r + hf
            c = "0" if k == 0 else f"v{a}"
            e(f"v_dot2_f32_bf16 v{a}, v{tab[(k,r)]}, s{64+k}, {c}")
for r in range(4):
    for hf in range(2):
        a = T_ACC + 2 * r + hf
        e(f"v_dot2_f32_bf16 v{a}, v{T_DN+24+r}, s{67+hf}, v{a}")
cu_reduce_store(F_IN, "L_done")
stamp(6)
with Guard():
    e("s_cmp_lg_u32 s3, 0")
    e("s_cbranch_scc1 L_done")
gather16(F_IN, T_O)
e(f"v_mul_f32 v{T_O}, v{T_O}, v{T_GB}")
rnd_bf16(f"v{T_O}", f"v{T_O}")
e(f"v_add_f32 v{T_O}, v{T_O}, v{T_X1}")
e(f"v_mov_b32 v{TT}, v{T_O}")
e(f"v_permlane16_swap_b32 v{T_O}, v{TT}")
e(f"v_cvt_pk_bf16_f32 v{T_O}, v{T_O}, v{TT}")
with Guard():
    setexec(0xf, 0xf)
    e(f"global_store_dword v{T_OUT}, v{T_O}, s[30:31]")
    stamp(7)
    e("s_branch L_done")
if OPT["dry"]:
    e("s_branch L_tail_dry_ret")

e.label("L_done")
if PROFILE:
    e("s_waitcnt vmcnt(0) lgkmcnt(0)")
    e("s_memrealtime s[96:97]")
    e("s_lshl_b32 s46, s2, 3")
    e("s_add_u32 s46, s46, s3")
    e("s_lshl_b32 s46, s46, 7")
    e(f"s_add_u32 s46, s46, 0x{TS_BASE:x}")
    e("s_mov_b64 exec, 1")
    e("v_mov_b32 v1, s46")
    e("s_waitcnt lgkmcnt(0)")
    for k in range(9):
        e(f"v_mov_b32 v2, s{80+2*k}")
        e(f"v_mov_b32 v3, s{81+2*k}")
        e(f"global_store_dwordx2 v1, v[2:3], s[34:35] offset:{8*k}")
        e("s_nop 1")
e.label("L_end")
e("s_endpgm")
e.raw(f""".section .rodata,"a"
.p2align 6
.amdhsa_kernel {KNAME}
  .amdhsa_next_free_vgpr 256
  .amdhsa_next_free_sgpr 102
  .amdhsa_accum_offset 256
  .amdhsa_group_segment_fixed_size 0
  .amdhsa_kernarg_size 112
  .amdhsa_user_sgpr_count 2
  .amdhsa_user_sgpr_kernarg_segment_ptr 1
  .amdhsa_system_sgpr_workgroup_id_x 1
.end_amdhsa_kernel""")
sys.stdout.write(e.text())
sys.stderr.write(f"maxv {e.maxv} maxs {e.maxs} lines {len(e.lines)}\n")
```

```python
import sys, os
sys.path.insert(0, os.path.dirname(os.path.abspath(__file__)))
from em import Em

OPT = dict(profile=0, depth=2, tdepth=8, dry=1, ntw="nt", nts="nt", force_global=0, spin=1 << 18, pre=1, tp=0, tbar=0, ug=9, cpf=1, cdry=0)
for a in sys.argv[1:]:
    k, v = a.split("=")
    OPT[k] = int(v) if v.lstrip("-").isdigit() else v
PROFILE = OPT["profile"]
DEPTH = OPT["depth"]
NT = OPT["ntw"] if OPT["ntw"] != "-" else ""
NTS = OPT["nts"] if OPT["nts"] != "-" else ""
KNAME = "adaLN_cond__gqa_block_cached__geglu_ffn__decode_kernel"

NONCE = 0x0
MP_IN = 0x1000
RP_IN = 0x9000
QP_IN = 0x19000
ML_IN = 0x39000
X1_IN = 0x3D000
A_IN = 0x3E000
F_IN = 0x4E000
O_IN = 0x5E000
TS_BASE = 0x8000000
TAGC = 0x9e3779b9
L_FLAG = 0; L_WML = 64; L_QB = 512; L_VEC = 1536; L_RED = 2048; L_RED2 = 18432; L_RED3 = 22528; L_RED4 = 26624; LDS_SIZE = 30720
LOG2E = 0x3fb8aa3b
SCALE = 0x3db504f3

e = Em()
DPPALL = "row_mask:0xf bank_mask:0xf"

def ror(n, bm=0xf):
    n %= 16
    if n == 0: return f"quad_perm:[0,1,2,3] row_mask:0xf bank_mask:0x{bm:x}"
    return f"row_ror:{n} row_mask:0xf bank_mask:0x{bm:x}"

class Guard:
    def __enter__(self):
        self.l = e.newlab("Lg")
        e(f"s_cbranch_execz {self.l}")
    def __exit__(self, *a):
        e.label(self.l)

def setexec(lo, hi):
    e(f"s_and_b32 exec_lo, s6, 0x{lo:x}")
    e(f"s_and_b32 exec_hi, s7, 0x{hi:x}")

def fullexec(): e("s_mov_b64 exec, s[6:7]")

def dry_enter():
    e("s_mov_b64 s[6:7], 0")
    e("s_mov_b64 exec, 0")

def dry_leave():
    e("s_mov_b64 s[6:7], -1")
    e("s_mov_b64 exec, -1")

def stamp(k, alt=None):
    if PROFILE and (alt is None or bool(alt) == bool(OPT["tp"])):
        e(f"s_memrealtime s[{80+2*k}:{81+2*k}]")

def rnd_bf16(dst, src):
    e(f"v_cvt_pk_bf16_f32 {dst}, {src}, {src}")
    e(f"v_lshlrev_b32 {dst}, 16, {dst}")

def rnd_pair(a, b):
    e(f"v_cvt_pk_bf16_f32 v{b}, v{a}, v{b}")
    e(f"v_lshlrev_b32 v{a}, 16, v{b}")
    e(f"v_and_b32 v{b}, 0xffff0000, v{b}")

def poll_begin():
    l = e.newlab("Lp"); g = e.newlab("Lq")
    e(f"s_mov_b32 s63, {OPT['spin']}")
    e.flush()
    e.label(l)
    e("s_sub_u32 s63, s63, 1")
    e(f"s_cbranch_scc1 {g}")
    return l, g

def bad_sent(regs, tmp):
    rs = list(regs); cur = rs.pop(0)
    while rs:
        if len(rs) >= 2: e(f"v_max3_u32 v{tmp}, v{cur}, v{rs[0]}, v{rs[1]}"); rs = rs[2:]
        else: e(f"v_max_u32 v{tmp}, v{cur}, v{rs[0]}"); rs = rs[1:]
        cur = tmp
    return cur

def poll_end(lg, regs, tmp):
    cur = bad_sent(regs, tmp)
    e(f"v_cmp_eq_u32 vcc, -1, v{cur}")
    e(f"s_cbranch_vccnz {lg[0]}")
    e.label(lg[1])

def tag_minmax(tags, t0, t1):
    for op, t in (("min", t0), ("max", t1)):
        rs = list(tags); cur = rs.pop(0)
        while rs:
            if len(rs) >= 2: e(f"v_{op}3_u32 v{t}, v{cur}, v{rs[0]}, v{rs[1]}"); rs = rs[2:]
            else: e(f"v_{op}_u32 v{t}, v{cur}, v{rs[0]}"); rs = rs[1:]
            cur = t

def poll_end_tags(lg, tags, t0, t1):
    tag_minmax(tags, t0, t1)
    e(f"v_cmp_ne_u32 vcc, s59, v{t0}")
    e(f"v_cmp_ne_u32 s[44:45], s59, v{t1}")
    e("s_or_b64 vcc, vcc, s[44:45]")
    e(f"s_cbranch_vccnz {lg[0]}")
    e.label(lg[1])

def vr(b, n=4): return f"v[{b}:{b+n-1}]"

def red_T32(a, b):
    e(f"v_permlane32_swap_b32 v{a}, v{b}")
    e(f"v_add_f32 v{a}, v{a}, v{b}")

def red_T16(a, b):
    e(f"v_permlane16_swap_b32 v{a}, v{b}")
    e(f"v_add_f32 v{a}, v{a}, v{b}")

def red_T32n(pairs):
    for a, b in pairs: e(f"v_permlane32_swap_b32 v{a}, v{b}")
    for a, b in pairs: e(f"v_add_f32 v{a}, v{a}, v{b}")

def red_T16n(pairs):
    for a, b in pairs: e(f"v_permlane16_swap_b32 v{a}, v{b}")
    for a, b in pairs: e(f"v_add_f32 v{a}, v{a}, v{b}")

def red_T8(dst, a, b):
    e(f"v_add_f32_dpp v{dst}, v{a}, v{a} {ror(8, 0x3)}")
    e(f"v_add_f32_dpp v{dst}, v{b}, v{b} {ror(8, 0xc)}")

def red_plain(op, a, t, bits):
    for b in bits:
        if b == 5:
            e(f"v_mov_b32 v{t}, v{a}")
            e(f"v_permlane32_swap_b32 v{a}, v{t}")
            e(f"{op} v{a}, v{a}, v{t}")
        elif b == 4:
            e(f"v_mov_b32 v{t}, v{a}")
            e(f"v_permlane16_swap_b32 v{a}, v{t}")
            e(f"{op} v{a}, v{a}, v{t}")
        elif b == 3:
            e(f"{op}_dpp v{a}, v{a}, v{a} {ror(8)}")
        elif b == 2:
            e(f"{op}_dpp v{a}, v{a}, v{a} {ror(4)}")
        elif b == 1:
            e(f"{op}_dpp v{a}, v{a}, v{a} quad_perm:[2,3,0,1] {DPPALL}")
        elif b == 0:
            e(f"{op}_dpp v{a}, v{a}, v{a} quad_perm:[1,0,3,2] {DPPALL}")

def ln_stats(xr, t0, packed=True):
    S, Q, T, U = t0, t0 + 1, t0 + 2, t0 + 3
    if packed:
        e("s_mov_b32 s64, 0x3f803f80")
        for k in range(4):
            e(f"v_dot2_f32_bf16 v{S}, v{xr+k}, s64, {'0' if k == 0 else f'v{S}'}")
            e(f"v_dot2_f32_bf16 v{Q}, v{xr+k}, v{xr+k}, {'0' if k == 0 else f'v{Q}'}")
    else:
        e(f"v_add_f32 v{S}, v{xr}, v{xr+1}")
        e(f"v_mul_f32 v{Q}, v{xr}, v{xr}")
        e(f"v_add_f32 v{T}, v{xr+2}, v{xr+3}")
        e(f"v_mul_f32 v{U}, v{xr+1}, v{xr+1}")
        e(f"v_add_f32 v{S}, v{S}, v{xr+4}")
        e(f"v_fmac_f32 v{Q}, v{xr+2}, v{xr+2}")
        e(f"v_add_f32 v{T}, v{T}, v{xr+5}")
        e(f"v_fmac_f32 v{U}, v{xr+3}, v{xr+3}")
        e(f"v_add_f32 v{S}, v{S}, v{xr+6}")
        e(f"v_fmac_f32 v{Q}, v{xr+4}, v{xr+4}")
        e(f"v_add_f32 v{T}, v{T}, v{xr+7}")
        e(f"v_fmac_f32 v{U}, v{xr+5}, v{xr+5}")
        e(f"v_add_f32 v{S}, v{S}, v{T}")
        e(f"v_fmac_f32 v{Q}, v{xr+6}, v{xr+6}")
        e(f"v_fmac_f32 v{U}, v{xr+7}, v{xr+7}")
        e(f"v_add_f32 v{Q}, v{Q}, v{U}")
    red_T32(S, Q)
    red_plain("v_add_f32", S, T, [4, 3, 2, 1, 0])
    e(f"v_readlane_b32 s64, v{S}, 0")
    e(f"v_readlane_b32 s65, v{S}, 32")
    e(f"v_mov_b32 v{T}, 0x3b000000")
    e(f"v_mul_f32 v{S}, s64, v{T}")
    e(f"v_mul_f32 v{Q}, s65, v{T}")
    e(f"v_fma_f32 v{Q}, -v{S}, v{S}, v{Q}")
    e(f"v_max_f32 v{Q}, 0, v{Q}")
    e(f"v_cvt_pk_bf16_f32 v{S}, v{S}, v{Q}")
    e(f"v_and_b32 v{Q}, 0xffff0000, v{S}")
    e(f"v_lshlrev_b32 v{S}, 16, v{S}")
    e(f"v_add_f32 v{Q}, 0x3727c5ac, v{Q}")
    rnd_bf16(f"v{Q}", f"v{Q}")
    e(f"v_sqrt_f32 v{Q}, v{Q}")
    rnd_bf16(f"v{Q}", f"v{Q}")
    e(f"v_rcp_f32 v{T}, v{Q}")
    e(f"v_fma_f32 v{U}, -v{Q}, v{T}, 1.0")
    e(f"v_fma_f32 v{T}, v{U}, v{T}, v{T}")
    e(f"v_readfirstlane_b32 s64, v{S}")
    e(f"v_readfirstlane_b32 s65, v{T}")
    e(f"v_readfirstlane_b32 s66, v{Q}")

def store_mode(instr_fmt):
    la = e.newlab("Ls"); lb = e.newlab("Ls")
    e.flush()
    e("s_cmp_lg_u32 s62, 0")
    e(f"s_cbranch_scc1 {la}")
    e(instr_fmt + " sc1")
    e(f"s_branch {lb}")
    e.label(la)
    e(instr_fmt)
    e.label(lb)
    e.nop(2)

class Interleaver:
    def __init__(self, spare): self.spare = spare
    def run(self, tile, npairs):
        lo = {}; hi = {}
        for k in range(npairs):
            for r in range(4):
                A_ = tile + 4 * (2 * k) + r; B_ = tile + 4 * (2 * k + 1) + r
                e(f"v_perm_b32 v{self.spare}, v{B_}, v{A_}, s48")
                e(f"v_perm_b32 v{B_}, v{B_}, v{A_}, s49")
                lo[(k, r)] = self.spare; hi[(k, r)] = B_
                self.spare = A_
        return lo, hi

def dots(lo, hi, npairs, acc, vec):
    for k in range(npairs):
        for r in range(4):
            for hf, tab in ((0, lo), (1, hi)):
                a = acc + 2 * r + hf
                c = "0" if k == 0 else f"v{a}"
                e(f"v_dot2_f32_bf16 v{a}, v{tab[(k,r)]}, {vec(k)}, {c}")

hdr = open(os.path.join(os.path.dirname(os.path.abspath(__file__)), "..", "cdna_kernels", KNAME[:-7] + ".s.ref")).read().split("\n")
for l in hdr:
    if l.startswith("; @launch"): break
    if l.startswith(";"): e.raw(l)
e.raw(f"; @launch grid=(256,1,1) block=(512,1,1) lds={LDS_SIZE}")
e.raw('.amdgcn_target "amdgcn-amd-amdhsa--gfx950"')
e.raw(".text")
e.raw(f".globl {KNAME}")
e.raw(".p2align 8")
e.raw(f".type {KNAME},@function")
e.raw(f"{KNAME}:")

e(f"""
s_cmp_ge_u32 s2, 0x100
s_cbranch_scc1 L_end
s_load_dwordx16 s[8:23], s[0:1], 0
s_load_dwordx8 s[24:31], s[0:1], 64
s_load_dwordx4 s[32:35], s[0:1], 96
""")
if OPT.get("wgxor", 0):
    e("s_lshr_b32 s3, s2, 3")
    e("s_and_b32 s3, s3, 7")
    e("s_xor_b32 s2, s2, s3")
if PROFILE:
    for k in range(82, 98): e(f"s_mov_b32 s{k}, 0")
stamp(0)
e(f"""
v_lshrrev_b32 v1, 6, v0
v_and_b32 v0, 63, v0
v_readfirstlane_b32 s3, v1
s_and_b32 s4, s2, 7
s_lshr_b32 s5, s2, 3
s_mov_b64 s[6:7], -1
v_mov_b32 v1, 0
v_lshlrev_b32 v2, 4, v0
""")
if OPT["cpf"]:
    e("s_getpc_b64 s[44:45]")
    e.label("L_pc1")
    e(f"s_sub_u32 s44, s44, L_pc1-{KNAME}")
    e("s_subb_u32 s45, s45, 0")
    e("s_mul_i32 s46, s3, 3072")
    e("v_add_u32 v3, s46, v2")
    for k in range(3):
        e(f"global_load_dwordx4 v[{16+4*k}:{19+4*k}], v3, s[44:45] offset:{1024*k}")
e(f"""
s_mov_b32 s48, 0x05040100
s_mov_b32 s49, 0x07060302
s_mul_i32 s51, s5, 7
s_add_u32 s60, s51, s4
s_mul_i32 s51, s60, 2341
s_lshr_b32 s51, s51, 16
s_mul_i32 s46, s51, 28
s_sub_u32 s52, s60, s46
s_xor_b32 s53, s5, {OPT.get("txor", 0)}
s_mov_b32 s47, 0
s_mov_b32 s62, 0
s_mov_b32 s38, 0x400000
s_mov_b32 s39, 0x20000
s_mov_b32 s42, 0x400000
s_mov_b32 s43, 0x20000
s_lshl_b32 s46, s51, 22
s_waitcnt lgkmcnt(0)
s_add_u32 s36, s10, s46
s_addc_u32 s37, s11, 0
s_and_b32 s37, s37, 0xffff
s_add_u32 s40, s12, s46
s_addc_u32 s41, s13, 0
s_and_b32 s41, s41, 0xffff
""")
stamp(7)
e(f"""
s_cmp_eq_u32 s4, 7
s_cbranch_scc1 L_tail_stream
""")
if OPT.get("tailonly", 0): e("s_branch L_done")
e(f"""
s_cmp_eq_u32 s3, 0
s_cbranch_scc1 L_chain
""")

KB = 64; VB = 160; DA = 32; DB = 48; ACC = 16; QB = 4; SR = 8; VOA = 63
NU = 6
e(f"""
s_sub_u32 s46, s3, 1
s_cmp_eq_u32 s52, 27
s_cselect_b32 s54, 3, 5
s_cselect_b32 s55, 4, 2
s_mul_i32 s56, s46, s54
s_min_u32 s57, s46, s55
s_add_u32 s56, s56, s57
s_mul_i32 s57, s52, 37
s_add_u32 s56, s56, s57
s_cmp_lt_u32 s46, s55
s_addc_u32 s54, s54, 0
s_lshl_b32 s55, s56, 12
v_bfe_u32 v3, v0, 2, 2
v_lshlrev_b32 v3, 8, v3
v_lshrrev_b32 v14, 4, v0
v_lshl_add_u32 v3, v14, 6, v3
v_and_b32 v14, 3, v0
v_lshl_add_u32 v3, v14, 4, v3
""")

def throttle(can_k, free_nv=None):
    l = e.newlab("Lt")
    e("s_cmp_lg_u32 s47, 0")
    e(f"s_cbranch_scc1 {l}")
    if free_nv is None: e(f"s_waitcnt vmcnt({DEPTH})")
    if can_k:
        e(f"ds_read_b32 v15, v1 offset:{L_FLAG}")
        e("s_waitcnt lgkmcnt(0)")
        e("v_readfirstlane_b32 s47, v15")
        e("s_cmp_eq_u32 s47, 0")
        e(f"s_cbranch_scc1 {l}")
        if free_nv is not None: e(f"s_waitcnt vmcnt({4*free_nv})")
        e("s_swappc_b64 s[98:99], s[100:101]")
    e.flush()
    e.label(l)

grp = 0
for tens in range(2):
    srd = 36 if tens == 0 else 40
    base = KB if tens == 0 else VB
    voff = "v3" if tens == 0 else "v2"
    for u in range(NU):
        if OPT["pre"] and grp == 0:
            e("s_cmp_ge_u32 s60, 64")
            e("s_cbranch_scc1 L_pre_a")
            e("s_barrier")
            e.label("L_pre_a")
        if grp == OPT["pre"]:
            if OPT["pre"]:
                e("s_cmp_lt_u32 s60, 64")
                e("s_cbranch_scc1 L_pre_b")
            e("s_barrier")
            if OPT["pre"]: e.label("L_pre_b")
            stamp(5)
        if u >= 3:
            e(f"s_cmp_gt_u32 s54, {u}")
            e(f"s_cselect_b32 s{srd+2}, 0x400000, 0")
        e(f"s_add_u32 s46, s55, {u*4096}")
        for j in range(4):
            e(f"buffer_load_dwordx4 {vr(base+16*u+4*j)}, {voff}, s[{srd}:{srd+3}], s46 offen offset:{j*1024} {NT}")
        grp += 1
        if grp == 1:
            for uu in range(3, NU):
                e(f"s_cmp_gt_u32 s54, {uu}")
                e(f"s_cselect_b32 s{69+uu}, 0, 0xff800000")
            e("s_getpc_b64 s[100:101]")
            e.label("L_pc0")
            e("s_add_u32 s100, s100, L_att_kphase-L_pc0")
            e("s_addc_u32 s101, s101, 0")
        if OPT["dry"] and grp == 2:
            l = e.newlab("Ld")
            e("s_cmp_lg_u32 s3, 7")
            e(f"s_cbranch_scc1 {l}")
            dry_enter()
            e("s_swappc_b64 s[98:99], s[100:101]")
            e("s_branch L_att_vphase")
            e.label("L_att_dry_ret")
            dry_leave()
            e.label(l)
        if grp >= 2 and grp < 2 * NU:
            if grp >= OPT.get("ug", 99): throttle(tens == 1, u + 1)
            else: throttle(tens == 1 and 4 * (u + 1) >= DEPTH)
stamp(1)
e("s_cmp_lg_u32 s47, 0")
e("s_cbranch_scc1 L_att_vphase")
lg = poll_begin()
e("s_sleep 1")
e(f"ds_read_b32 v15, v1 offset:{L_FLAG}")
e("s_waitcnt lgkmcnt(0)")
e("v_cmp_eq_u32 vcc, 0, v15")
e(f"s_cbranch_vccnz {lg[0]}")
e.label(lg[1])
e(f"s_waitcnt vmcnt({4*NU})")
e("s_swappc_b64 s[98:99], s[100:101]")
e("s_branch L_att_vphase")

C_X = 4; C_CP = 8; C_XP = 9; C_FL = 10; C_AV = 11; C_AD = 12; C_VW = 13
C_QA = 146; C_XA = 147; C_A = 16; C_WQ = 80; C_SP = 144; C_ONES = 148; C_MP = 152; C_VP = 168; C_ACC = 176; C_T = 184; MPL = 192
F_F = 64; F_A = 80; F_R = 96; WM = 160
e.label("L_chain")
e(f"""
s_setprio 3
global_load_dword v{C_FL}, v1, s[34:35] offset:{NONCE} sc1
s_lshr_b32 s57, s60, 6
v_lshlrev_b32 v{C_VW}, 2, v0
ds_write_b32 v{C_VW}, v1 offset:0
ds_write_b32 v{C_VW}, v1 offset:256
v_lshrrev_b32 v14, 3, v0
v_lshlrev_b32 v14, 4, v14
v_and_b32 v15, 7, v0
v_lshlrev_b32 v15, 4, v15
s_mov_b32 s44, s28
s_mov_b32 s45, s29
s_movk_i32 s61, 6144
s_and_b32 s54, s60, 15
s_lshr_b32 s55, s60, 4
s_lshl_b32 s56, s55, 13
s_lshl_b32 s46, s54, 9
s_add_u32 s56, s56, s46
s_add_u32 s56, s56, 0x{MP_IN:x}
s_lshl_b32 s54, s54, 7
s_cmp_lt_u32 s60, 64
s_cbranch_scc1 L_ch_isM
s_sub_u32 s46, s60, 64
s_and_b32 s54, s46, 31
s_lshr_b32 s55, s46, 5
s_lshl_b32 s56, s55, 14
s_lshl_b32 s46, s54, 9
s_add_u32 s56, s56, s46
s_add_u32 s56, s56, 0x{RP_IN:x}
s_lshl_b32 s54, s54, 7
s_add_u32 s54, s54, 2048
s_cmp_lt_u32 s60, 192
s_cbranch_scc1 L_ch_isM
s_sub_u32 s54, s60, 160
s_mov_b32 s55, 3
s_lshl_b32 s56, s54, 9
s_add_u32 s56, s56, 0x{QP_IN + 3*32768:x}
s_lshl_b32 s54, s54, 7
s_mov_b32 s44, s14
s_mov_b32 s45, s15
s_movk_i32 s61, 8192
L_ch_isM:
s_lshl_b32 s46, s55, 8
v_add_u32 v3, s46, v{C_VW}
global_load_dword v{C_CP}, v3, s[26:27]
s_lshl_b32 s46, s55, 7
v_add_u32 v3, s46, v14
v_mul_lo_u32 v3, v3, s61
v_add3_u32 v3, v3, v15, s54
""")
for i in range(16):
    e(f"global_load_dwordx4 {vr(C_A+4*i)}, v3, s[44:45] {NTS}")
    if i < 15:
        e("s_add_u32 s44, s44, s61")
        e("s_addc_u32 s45, s45, 0")
stamp(7)
e(f"""
s_waitcnt lgkmcnt(0)
s_barrier
s_and_b32 s58, s60, 63
""")
e(f"""
v_mov_b32 v{C_ONES}, -1
v_mov_b32 v{C_ONES+1}, -1
v_mov_b32 v{C_ONES+2}, -1
v_mov_b32 v{C_ONES+3}, -1
v_lshrrev_b32 v3, 5, v0
s_lshl_b32 s46, s51, 2
v_add_u32 v3, s46, v3
s_movk_i32 s46, 14336
v_mul_lo_u32 v{C_T}, v3, s46
v_and_b32 v3, 31, v0
v_lshl_add_u32 v{C_T}, v3, 4, v{C_T}
s_lshl_b32 s46, s52, 9
s_add_u32 s46, s46, 0x{O_IN:x}
v_add_u32 v{C_T}, s46, v{C_T}
v_add_u32 v{C_T+1}, 28672, v{C_T}
global_store_dwordx4 v{C_T}, {vr(C_ONES)}, s[34:35] sc1
global_store_dwordx4 v{C_T+1}, {vr(C_ONES)}, s[34:35] sc1
v_lshrrev_b32 v3, 3, v0
v_lshlrev_b32 v3, 3, v3
v_lshl_add_u32 v{C_AV}, v15, 2, v3
s_lshl_b32 s46, s57, 7
v_add_u32 v{C_QA}, s46, v14
v_lshlrev_b32 v{C_QA}, 13, v{C_QA}
s_lshl_b32 s46, s58, 7
v_add3_u32 v{C_QA}, v{C_QA}, v15, s46
s_lshl_b32 s46, s57, 8
v_add_u32 v{C_XA}, s46, v{C_VW}
v_lshlrev_b32 v14, 1, v14
v_add_u32 v{C_AD}, s56, v{C_AV}
""")
if OPT["dry"] and OPT["cdry"]:
    dry_enter()
    e("s_branch L_chain_compute")
    e.label("L_chain_dry_ret")
    dry_leave()
e("s_branch L_chain_compute")

T_WO = 16; T_G = 80; T_U = 112; T_DN = 144; T_SP = 176
T_CB = 177; T_SB = 178; T_GA = 179; T_GB = 180; T_X = 181; T_X1 = 182
T_PO = 183; T_PO2 = 184; T_PM = 185; T_A2 = 186; T_XF = 187; T_XO = 188; T_R2W = 189; T_R2R = 190; T_ST = 191; T_OUT = 192
T_XS = 193; T_RW = 194; T_RR = 195; T_NC = 196; T_RA = 197; T_RB = 198; T_POB = 4; T_POB2 = 5; T_PMB = 6; T_WA = 8; T_WB = 10; T_P = 12
T_O = 200; T_ML = 208; T_ACC = 216; T_T = 232
TD = OPT["tdepth"]
e.label("L_tail_stream")
e(f"global_load_dword v{T_NC}, v1, s[34:35] offset:{NONCE} sc1")
if OPT.get("gupf", 0):
    PFP = {1: "", 2: "nt", 3: "sc1"}[OPT["gupf"]]
    e("s_lshl_b32 s46, s53, 3")
    e("s_add_u32 s46, s46, s3")
    e("s_mul_i32 s46, s46, 7168")
    e("v_add_u32 v3, s46, v2")
    e("v_add_u32 v14, 0x1000, v3")
    for mat, (ptr, tile) in enumerate(((20, T_G), (22, T_U))):
        for i in range(7):
            e(f"global_load_dwordx4 {vr(tile+4*i)}, {'v3' if i < 4 else 'v14'}, s[{ptr}:{ptr+1}] offset:{(i%4)*1024} {PFP}")
def wo_base(head, sl, dst):
    e(f"""
s_lshr_b32 s46, {sl}, 1
s_lshl_b32 s46, s46, 5
s_and_b32 s54, {sl}, 1
s_lshl_b32 s54, s54, 2
s_add_u32 s46, s46, s54
s_lshl_b32 s54, {head}, 7
s_add_u32 s46, s46, s54
s_lshl_b32 s46, s46, 10
v_add_u32 {dst}, s46, v2
""")
def wo_loads(tile, hook=None):
    for n in range(16):
        drel = 8 * (n & 3) + 2 * (n >> 3) + ((n >> 2) & 1)
        off = drel * 1024
        e(f"s_add_u32 s44, s16, {off & ~0xfff}")
        e("s_addc_u32 s45, s17, 0")
        e(f"global_load_dwordx4 {vr(tile+4*n)}, v3, s[44:45] offset:{off & 0xfff} {NT}")
e(f"""
s_and_b32 s46, s53, 3
s_cmp_eq_u32 s46, 3
s_cselect_b32 s75, 4, 8
s_cmp_ge_u32 s53, 28
s_cselect_b32 s75, 8, s75
s_cselect_b32 s76, 7, 0
s_cmp_lt_u32 s3, s75
s_cselect_b32 s75, 1, 0
s_cmp_lt_u32 s3, s76
s_cselect_b32 s76, 1, 0
s_lshl_b32 s77, s3, 2
s_add_u32 s77, s77, 3
s_sub_u32 s78, s53, 24
s_cmp_eq_u32 s75, 0
s_cbranch_scc1 L_t_noA
""")
wo_base("s53", "s3", "v3")
wo_loads(T_WO)
e.label("L_t_noA")
e("s_cmp_eq_u32 s76, 0")
e("s_cbranch_scc1 L_t_noB")
wo_base("s77", "s78", "v3")
wo_loads(T_G)
e.label("L_t_noB")
e(f"""
s_cmp_lg_u32 s3, 0
s_cbranch_scc1 L_t_noclr
v_mov_b32 v{T_O}, -1
v_mov_b32 v{T_O+1}, -1
v_mov_b32 v{T_O+2}, -1
v_mov_b32 v{T_O+3}, -1
s_lshl_b32 s46, s53, 11
v_add_u32 v14, s46, v2
v_add_u32 v15, 0x{A_IN:x}, v14
global_store_dwordx4 v15, {vr(T_O)}, s[34:35] sc1
global_store_dwordx4 v15, {vr(T_O)}, s[34:35] offset:1024 sc1
v_add_u32 v15, 0x{F_IN:x}, v14
global_store_dwordx4 v15, {vr(T_O)}, s[34:35] sc1
global_store_dwordx4 v15, {vr(T_O)}, s[34:35] offset:1024 sc1
s_lshl_b32 s46, s53, 6
s_add_u32 s46, s46, 0x{X1_IN:x}
v_add_u32 v15, s46, v2
s_mov_b64 exec, 15
global_store_dwordx4 v15, {vr(T_O)}, s[34:35] sc1
s_getreg_b32 s46, hwreg(HW_REG_XCC_ID)
s_and_b32 s46, s46, 15
s_add_u32 s46, s46, 1
v_mov_b32 v15, s46
v_mov_b32 v14, s53
s_mov_b64 exec, 1
s_waitcnt vmcnt(0)
global_store_byte v14, v15, s[32:33] offset:128 sc1
s_mov_b64 exec, -1
L_t_noclr:
""")
e(f"""
v_lshrrev_b32 v14, 2, v0
v_and_b32 v15, 3, v0
v_lshlrev_b32 v{T_PO}, 9, v14
v_lshl_add_u32 v{T_PO}, v15, 4, v{T_PO}
s_mul_i32 s46, s53, 14336
s_lshl_b32 s54, s3, 6
s_add_u32 s46, s46, s54
s_add_u32 s46, s46, 0x{O_IN:x}
s_mul_i32 s54, s77, 14336
s_lshl_b32 s55, s78, 6
s_add_u32 s54, s54, s55
s_add_u32 s54, s54, 0x{O_IN:x}
v_add_u32 v{T_POB}, s54, v{T_PO}
v_add_u32 v{T_POB2}, 0x2000, v{T_POB}
v_add_u32 v{T_PO}, s46, v{T_PO}
v_add_u32 v{T_PO2}, 0x2000, v{T_PO}
s_lshl_b32 s46, s53, 9
s_add_u32 s46, s46, 0x{ML_IN:x}
v_lshlrev_b32 v{T_PM}, 4, v14
s_lshl_b32 s54, s77, 9
s_add_u32 s54, s54, 0x{ML_IN:x}
v_add_u32 v{T_PMB}, s54, v{T_PM}
v_add_u32 v{T_PM}, s46, v{T_PM}
s_lshl_b32 s46, s53, 11
v_add_u32 v{T_A2}, s46, v2
v_add_u32 v{T_XF}, 0x{X1_IN:x}, v2
v_lshlrev_b32 v14, 2, v0
s_lshl_b32 s46, s3, 8
v_add_u32 v14, s46, v14
v_add_u32 v{T_XO}, 0x{X1_IN:x}, v14
v_lshlrev_b32 v14, 1, v14
v_add_u32 v{T_RA}, 0x{RP_IN+4096:x}, v14
v_lshrrev_b32 v15, 5, v0
v_lshlrev_b32 v{T_R2W}, 8, v15
v_and_b32 v15, 7, v0
v_lshl_add_u32 v{T_R2W}, v15, 5, v{T_R2W}
v_bfe_u32 v15, v0, 3, 2
v_lshl_add_u32 v{T_R2W}, v15, 3, v{T_R2W}
s_lshl_b32 s46, s3, 9
v_add_u32 v{T_R2W}, s46, v{T_R2W}
v_lshrrev_b32 v15, 3, v0
v_lshlrev_b32 v{T_R2R}, 9, v15
v_and_b32 v15, 7, v0
v_lshl_add_u32 v{T_R2R}, v15, 2, v{T_R2R}
s_lshl_b32 s46, s3, 5
v_add_u32 v{T_R2R}, s46, v{T_R2R}
s_lshl_b32 s46, s3, 11
v_lshlrev_b32 v{T_RW}, 5, v0
v_add_u32 v{T_RW}, s46, v{T_RW}
s_lshl_b32 s46, s3, 10
v_add_u32 v{T_RR}, s46, v2
s_lshl_b32 s46, s3, 6
v_add_u32 v15, s46, v0
v_lshrrev_b32 v{T_ST}, 2, v15
v_lshlrev_b32 v{T_ST}, 11, v{T_ST}
v_and_b32 v15, 3, v15
v_lshl_add_u32 v{T_ST}, v15, 4, v{T_ST}
s_lshl_b32 s46, s53, 6
v_add_u32 v{T_ST}, s46, v{T_ST}
v_and_b32 v15, 3, v0
v_lshlrev_b32 v{T_OUT}, 3, v15
v_lshrrev_b32 v15, 5, v0
v_lshl_add_u32 v{T_OUT}, v15, 2, v{T_OUT}
s_lshl_b32 s46, s53, 5
v_add_u32 v{T_OUT}, s46, v{T_OUT}
global_load_dword v{T_X}, v{T_OUT}, s[8:9]
v_bfe_u32 v15, v0, 4, 1
v_lshlrev_b32 v15, 2, v15
v_lshl_add_u32 v15, v{T_OUT}, 1, v15
v_add_u32 v{T_XS}, 0x{X1_IN:x}, v15
v_lshlrev_b32 v15, 1, v15
v_add_u32 v{T_RB}, 0x{RP_IN:x}, v15
""")
if OPT["dry"]:
    l = e.newlab("Ld")
    e("s_cmp_lg_u32 s3, 1")
    e(f"s_cbranch_scc1 {l}")
    dry_enter()
    e("s_branch L_tail_compute")
    e.label("L_tail_dry_ret")
    dry_leave()
    e.label(l)
e("s_cmp_ge_u32 s53, 28")
e("s_cbranch_scc1 L_t_ld_aux")
if OPT["tbar"]: e("s_barrier")
e(f"""
v_lshrrev_b32 v14, 3, v0
v_lshlrev_b32 v14, 3, v14
s_lshl_b32 s46, s3, 6
v_add_u32 v14, s46, v14
s_movk_i32 s46, 3584
v_mul_lo_u32 v14, v14, s46
v_and_b32 v3, 7, v0
v_lshl_add_u32 v14, v3, 4, v14
s_lshl_b32 s46, s53, 7
v_add_u32 v14, s46, v14
v_bfe_u32 v3, v0, 2, 1
v_mul_u32_u24 v3, 14336, v3
v_add_u32 v15, 14336, v14
v_sub_u32 v15, v15, v3
v_add_u32 v14, v14, v3
""")
for mat, (ptr, tile) in enumerate(((20, T_G), (22, T_U))):
    for i in range(8):
        if i % 4 == 0 and TD: e(f"s_waitcnt vmcnt({TD})")
        e(f"s_add_u32 s44, s{ptr}, {(i%4)*3584}")
        e(f"s_addc_u32 s45, s{ptr+1}, 0")
        e(f"global_load_dwordx4 {vr(tile+4*i)}, {'v14' if i < 4 else 'v15'}, s[44:45] {NT if not OPT.get('gupf', 0) else OPT.get('gut', '').replace('-', '')}")
if OPT["tbar"]: e("s_barrier")
e.label("L_t_ld_aux")
PL = 200
def aux_loads():
    for rk in range(4):
        e(f"s_add_u32 s44, s34, {rk*16384}")
        e("s_addc_u32 s45, s35, 0")
        e(f"global_load_dwordx2 v[{PL+8*rk}:{PL+8*rk+1}], v{T_RA}, s[44:45] sc1")
        e(f"global_load_dwordx2 v[{PL+8*rk+4}:{PL+8*rk+5}], v{T_RB}, s[44:45] sc1")
        e(f"s_add_u32 s44, s44, 4096")
        e("s_addc_u32 s45, s45, 0")
        e(f"global_load_dwordx2 v[{PL+8*rk+2}:{PL+8*rk+3}], v{T_RA}, s[44:45] sc1")
        e(f"s_add_u32 s44, s44, 8192")
        e("s_addc_u32 s45, s45, 0")
        e(f"global_load_dwordx2 v[{PL+8*rk+6}:{PL+8*rk+7}], v{T_RB}, s[44:45] sc1")
    e(f"v_and_b32 v14, 31, v0")
    e(f"global_load_ubyte v{PL+32}, v14, s[32:33] offset:128 sc1")
if TD: e(f"s_waitcnt vmcnt({TD})")
aux_loads()
e("s_cmp_ge_u32 s53, 28")
e("s_cbranch_scc1 L_t_nodn")
e(f"""
s_lshl_b32 s46, s53, 6
s_lshl_b32 s54, s3, 3
s_add_u32 s46, s46, s54
s_lshl_b32 s46, s46, 10
v_add_u32 v3, s46, v2
""")
for i in range(8):
    off = i * 1024
    e(f"s_add_u32 s44, s24, {off & ~0xfff}")
    e("s_addc_u32 s45, s25, 0")
    e(f"global_load_dwordx4 {vr(T_DN+4*i)}, v3, s[44:45] offset:{off & 0xfff} {NT}")
e("s_waitcnt vmcnt(25)")
e("s_branch L_t_il1")
e.label("L_t_nodn")
e("s_waitcnt vmcnt(17)")
e.label("L_t_il1")
stamp(2, True)
e(f"v_add_u32 v{T_NC}, 0x{TAGC:x}, v{T_NC}")
il = Interleaver(T_SP)
wo_lo, wo_hi = il.run(T_WO, 8)
g_lo, g_hi = il.run(T_G, 4)
u_lo, u_hi = il.run(T_U, 4)
e(f"v_readfirstlane_b32 s59, v{T_NC}")
e(f"s_mov_b32 s63, {OPT['spin']}")
e("s_cmp_ge_u32 s53, 28")
e("s_cbranch_scc1 L_t_aux_w0")
e("s_waitcnt vmcnt(8)")
e("s_branch L_t_aux_chk")
lg = poll_begin()
e("s_sleep 8")
aux_loads()
e.label("L_t_aux_w0")
e("s_waitcnt vmcnt(0)")
e.label("L_t_aux_chk")
tag_minmax([PL + 2 * k + 1 for k in range(16)], T_T + 2, T_T + 3)
e(f"v_cmp_ne_u32 vcc, s59, v{T_T+2}")
e(f"v_cmp_ne_u32 s[44:45], s59, v{T_T+3}")
e("s_or_b64 vcc, vcc, s[44:45]")
e(f"v_cmp_eq_u32 s[44:45], 0, v{PL+32}")
e("s_or_b64 vcc, vcc, s[44:45]")
e(f"s_cbranch_vccnz {lg[0]}")
e.label(lg[1])
stamp(3, True)
if not OPT["force_global"]:
    e("s_getreg_b32 s46, hwreg(HW_REG_XCC_ID)")
    e("s_and_b32 s46, s46, 15")
    e("s_add_u32 s46, s46, 1")
    e(f"v_cmp_ne_u32 vcc, s46, v{PL+32}")
    e("s_cmp_eq_u64 vcc, 0")
    e("s_cselect_b32 s62, 1, 0")
for k, dst in ((0, T_SB), (2, T_CB), (4, T_GA), (6, T_GB)):
    e(f"v_add_f32 v{PL+k}, v{PL+k}, v{PL+8+k}")
    e(f"v_add_f32 v{PL+16+k}, v{PL+16+k}, v{PL+24+k}")
    e(f"v_add_f32 v{PL+k}, v{PL+k}, v{PL+16+k}")
    rnd_bf16(f"v{dst}", f"v{PL+k}")
e(f"v_add_f32 v{T_CB}, 1.0, v{T_CB}")
rnd_bf16(f"v{T_CB}", f"v{T_CB}")
e(f"v_bfe_u32 v15, v0, 4, 1")
e(f"v_lshlrev_b32 v15, 4, v15")
e(f"v_lshrrev_b32 v{T_X}, v15, v{T_X}")
e(f"v_lshlrev_b32 v{T_X}, 16, v{T_X}")

def ffn_pass(src, ldsoff, fillers=None):
    H2 = T_O
    e(f"v_mov_b32_dpp v{T_T}, v{src} quad_perm:[1,1,3,3] {DPPALL}")
    e(f"v_cvt_pk_bf16_f32 v{T_T}, v{src}, v{T_T}")
    e(f"v_mov_b32_dpp v{H2}, v{T_T} quad_perm:[0,0,0,0] {DPPALL}")
    e(f"v_mov_b32_dpp v{H2+1}, v{T_T} quad_perm:[2,2,2,2] {DPPALL}")
    e(f"v_mov_b32_dpp v{H2+2}, v{H2} row_half_mirror {DPPALL}")
    e(f"v_mov_b32_dpp v{H2+3}, v{H2+1} row_half_mirror {DPPALL}")
    for k in range(4):
        for mat, (lo, hi) in enumerate(((g_lo, g_hi), (u_lo, u_hi))):
            for r in range(4):
                for hf, tab in ((0, lo), (1, hi)):
                    a_ = T_ACC + 8 * mat + 2 * r + hf
                    c = "0" if k == 0 else f"v{a_}"
                    e(f"v_dot2_f32_bf16 v{a_}, v{tab[(k,r)]}, v{H2+k}, {c}")
                if fillers and hf == 1 and r % 2 == 1: e(fillers.pop(0))
    while fillers: e(fillers.pop(0))
    red_T32n([(T_ACC + i, T_ACC + 8 + i) for i in range(8)])
    red_T16n([(T_ACC + i, T_ACC + 4 + i) for i in range(4)])
    red_T8(T_T, T_ACC, T_ACC + 2)
    red_T8(T_T + 1, T_ACC + 1, T_ACC + 3)
    e(f"ds_write_b64 v{T_R2W}, v[{T_T}:{T_T+1}] offset:{ldsoff}")

def ffn_collect(dst, tmp, tmp2, ldsoff):
    e(f"ds_read_b32 v{dst}, v{T_R2R} offset:{ldsoff}")
    e(f"ds_read_b32 v{tmp}, v{T_R2R} offset:{ldsoff+256}")
    e("s_waitcnt lgkmcnt(0)")
    red_T32(dst, tmp)
    red_plain("v_add_f32", dst, tmp2, [4, 3])

e("s_cmp_ge_u32 s53, 28")
e("s_cbranch_scc1 L_t_nopre")
ffn_pass(T_CB, L_RED3)
ffn_pass(T_SB, L_RED4)
e("s_waitcnt lgkmcnt(0)")
e("s_barrier")
ffn_collect(T_P, T_T, T_T + 1, L_RED3)
ffn_collect(T_P + 1, T_T, T_T + 1, L_RED4)
e("s_waitcnt vmcnt(0)")
d_lo, d_hi = il.run(T_DN, 4)
e.flush()
e.label("L_t_nopre")
stamp(4, True)
stamp(1)
e("s_branch L_tail_compute")

e.raw(".p2align 6")
e.label("L_att_kphase")
e("v_and_b32 v14, 3, v0")
e("v_lshlrev_b32 v14, 8, v14")
e("v_lshrrev_b32 v15, 2, v0")
e("v_lshl_add_u32 v14, v15, 4, v14")
e(f"ds_read_b128 {vr(QB)}, v14 offset:{L_QB}")
e("s_waitcnt lgkmcnt(0)")
stamp(2)

def kmfma(u):
    D = DA if u % 2 == 0 else DB
    for j in range(4):
        e(f"v_mfma_f32_16x16x32_bf16 {vr(D+4*j)}, {vr(KB+16*u+4*j)}, {vr(QB)}, 0")

def kpost(u):
    D = DA if u % 2 == 0 else DB
    S = SR + u
    for b in range(4):
        for j in range(4):
            bb = (j + b) % 4
            mod = ror(4 * (j - bb), 1 << j)
            if b == 0: e(f"v_mov_b32_dpp v{S}, v{D+4*j+bb} {mod}")
            else: e(f"v_add_f32_dpp v{S}, v{D+4*j+bb}, v{S} {mod}")
    rnd_bf16(f"v{S}", f"v{S}")
    e(f"v_mul_f32 v{S}, 0x{SCALE:x}, v{S}")
    rnd_bf16(f"v{S}", f"v{S}")
    if u >= 3: e(f"v_add_f32 v{S}, s{69+u}, v{S}")

kmfma(0)
for u in range(NU):
    if u + 1 < NU: kmfma(u + 1)
    kpost(u)
e(f"v_max3_f32 v14, v{SR}, v{SR+1}, v{SR+2}")
e(f"v_max3_f32 v14, v14, v{SR+3}, v{SR+4}")
e(f"v_max_f32 v14, v14, v{SR+5}")
red_plain("v_max_f32", 14, 15, [3, 2, 4, 5])
e(f"s_mov_b32 s46, 0x{LOG2E:x}")
e(f"v_mul_f32 v{DB}, s46, v14")
PB = KB; TP = KB + 32
for u in range(NU): e(f"v_fma_f32 v{SR+u}, v{SR+u}, s46, -v{DB}")
for u in range(NU): e(f"v_exp_f32 v{SR+u}, v{SR+u}")
for u in range(NU):
    S = SR + u; B0 = PB + 4 * u; T = TP + 3 * u
    e(f"v_cvt_pk_bf16_f32 v{T}, v{S}, v{S}")
    e(f"v_and_b32 v{B0}, 0xffff, v{T}")
    e(f"v_and_b32 v{T+1}, 0xffff, v{T}")
    e(f"v_and_b32 v{T}, 0xffff0000, v{T}")
for u in range(NU):
    B0 = PB + 4 * u; T = TP + 3 * u
    e(f"v_mov_b32_dpp v{B0}, v{T} {ror(4, 0xa)}")
    e(f"v_mov_b32_dpp v{T+1}, v{T} {ror(4, 0x5)}")
for u in range(NU):
    B0 = PB + 4 * u; T = TP + 3 * u
    e(f"v_mov_b32_dpp v{B0+1}, v{T+1} {ror(12)}")
    e(f"v_mov_b32_dpp v{B0+2}, v{B0} {ror(8)}")
    e(f"v_mov_b32_dpp v{B0+3}, v{T+1} {ror(4)}")
e(f"v_add_f32 v{SR}, v{SR}, v{SR+1}")
e(f"v_add_f32 v{SR+2}, v{SR+2}, v{SR+3}")
e(f"v_add_f32 v{SR+4}, v{SR+4}, v{SR+5}")
e(f"v_add_f32 v{SR}, v{SR}, v{SR+2}")
e(f"v_add_f32 v15, v{SR}, v{SR+4}")
red_plain("v_add_f32", 15, SR + 1, [3, 2, 4, 5])
e(f"""
v_and_b32 v{SR}, 3, v0
v_lshlrev_b32 v{SR}, 6, v{SR}
s_lshl_b32 s46, s3, 3
v_add_u32 v{SR}, s46, v{SR}
""")
setexec(0xf, 0)
e(f"ds_write_b64 v{SR}, v[14:15] offset:{L_WML-8}")
fullexec()
e(f"""
v_and_b32 v{VOA}, 3, v0
v_lshlrev_b32 v{VOA}, 9, v{VOA}
v_lshrrev_b32 v15, 4, v0
v_lshl_add_u32 v{VOA}, v15, 7, v{VOA}
v_bfe_u32 v15, v0, 2, 1
v_lshl_add_u32 v{VOA}, v15, 4, v{VOA}
s_lshl_b32 s46, s3, 11
v_add_u32 v{VOA}, s46, v{VOA}
""")
stamp(3)
e.flush()
e("s_setpc_b64 s[98:99]")

e.label("L_att_vphase")
for u in range(NU):
    with Guard():
        e(f"s_waitcnt vmcnt({4*(NU-1-u)})")
    V0 = VB + 16 * u
    for m in range(4):
        for r in range(m + 1, 4):
            e(f"v_swap_b32 v{V0+4*m+r}, v{V0+4*r+m}")
    for r in range(4):
        c = "0" if u == 0 else vr(ACC + 4 * r)
        e(f"v_mfma_f32_16x16x32_bf16 {vr(ACC+4*r)}, {vr(V0+4*r)}, {vr(PB+4*u)}, {c}")
stamp(4)
setexec(0x00ff00ff, 0x00ff00ff)
for r in range(4):
    e(f"ds_write_b128 v{VOA}, {vr(ACC+4*r)} offset:{L_RED-2048+32*r}")
fullexec()
with Guard():
    e("s_waitcnt lgkmcnt(0)")
    e("s_barrier")
    e("s_branch L_done")
if OPT["dry"]:
    e("s_branch L_att_dry_ret")

def c_distribute(src):
    e(f"ds_write_b32 v{C_VW}, v{src} offset:{L_VEC}")
    e("s_waitcnt lgkmcnt(0)")
    e(f"ds_read_b128 {vr(C_VP)}, v14 offset:{L_VEC}")
    e(f"ds_read_b128 {vr(C_VP+4)}, v14 offset:{L_VEC+16}")

def c_gemv(lo, hi, dst):
    dots(lo, hi, 8, C_ACC, lambda k: f"v{C_VP+k}")
    red_T32n([(C_ACC + i, C_ACC + 4 + i) for i in range(4)])
    red_T16n([(C_ACC + i, C_ACC + 2 + i) for i in range(2)])
    red_T8(dst, C_ACC, C_ACC + 1)

e.raw(".p2align 6")
e.label("L_chain_compute")
with Guard():
    e("s_waitcnt vmcnt(2)")
stamp(1)
T0 = C_T
e(f"s_mov_b32 s46, 0x{LOG2E ^ 0x80000000:x}")
e(f"v_lshlrev_b32 v{T0}, 16, v{C_CP}")
e(f"v_and_b32 v{T0+1}, 0xffff0000, v{C_CP}")
for k in range(2): e(f"v_mul_f32 v{T0+2+k}, s46, v{T0+k}")
for k in range(2): e(f"v_exp_f32 v{T0+2+k}, v{T0+2+k}")
for k in range(2): e(f"v_add_f32 v{T0+2+k}, 1.0, v{T0+2+k}")
for k in range(2): e(f"v_rcp_f32 v{T0+4+k}, v{T0+2+k}")
for k in range(2): e(f"v_mul_f32 v{T0+6+k}, v{T0+k}, v{T0+4+k}")
for k in range(2): e(f"v_fma_f32 v{T0+k}, -v{T0+6+k}, v{T0+2+k}, v{T0+k}")
for k in range(2): e(f"v_fma_f32 v{T0+6+k}, v{T0+k}, v{T0+4+k}, v{T0+6+k}")
e(f"v_cvt_pk_bf16_f32 v{T0}, v{T0+6}, v{T0+7}")
c_distribute(T0)
cil = Interleaver(C_SP)
a_lo, a_hi = cil.run(C_A, 8)
e(f"v_add_u32 v{C_T+1}, 0x{TAGC:x}, v{C_FL}")
e("s_waitcnt lgkmcnt(0)")
e(f"v_readfirstlane_b32 s59, v{C_T+1}")
e("s_mov_b32 s61, 0")
e("s_cmp_ge_u32 s60, 192")
e("s_cbranch_scc1 L_ch_noA2")
e.flush()
e.label("L_ch_gemvA")
c_gemv(a_lo, a_hi, C_T)
e(f"v_mov_b32 v{C_T+1}, s59")
with Guard():
    e(f"global_store_dwordx2 v{C_AD}, v[{C_T}:{C_T+1}], s[34:35] sc1")
e.flush()
e("s_cmp_lg_u32 s61, 0")
e("s_cbranch_scc1 L_ch_gemvA_ret")
e.label("L_ch_noA2")
stamp(2)
e(f"s_lshl_b32 s46, s57, 10")
e(f"s_add_u32 s46, s46, 0x{MP_IN:x}")
e(f"v_add_u32 v3, s46, v2")
def mp_loads():
    for k in range(8):
        e(f"s_add_u32 s44, s34, {k*4096}")
        e("s_addc_u32 s45, s35, 0")
        e(f"global_load_dwordx4 {vr(MPL+4*k)}, v3, s[44:45] sc1")
with Guard():
    e(f"global_load_dwordx4 {vr(C_X)}, v2, s[8:9]")
    e(f"global_load_dword v{C_XP}, v{C_XA}, s[8:9]")
    e("s_mov_b32 s44, s14")
    e("s_mov_b32 s45, s15")
    for i in range(16):
        e(f"global_load_dwordx4 {vr(C_WQ+4*i)}, v{C_QA}, s[44:45] {NTS}")
        if i < 15:
            e("s_add_u32 s44, s44, 8192")
            e("s_addc_u32 s45, s45, 0")
    mp_loads()
    e("s_waitcnt vmcnt(24)")
ln_stats(C_X, C_T)
N0 = C_X
e(f"v_lshlrev_b32 v{N0}, 16, v{C_XP}")
e(f"v_and_b32 v{N0+1}, 0xffff0000, v{C_XP}")
for k in range(2): e(f"v_subrev_f32 v{N0+k}, s64, v{N0+k}")
rnd_pair(N0, N0 + 1)
for k in range(2): e(f"v_mul_f32 v{N0+2+k}, s65, v{N0+k}")
for k in range(2): e(f"v_fma_f32 v{N0+k}, -v{N0+2+k}, s66, v{N0+k}")
for k in range(2): e(f"v_fma_f32 v{N0+k}, v{N0+k}, s65, v{N0+2+k}")
rnd_pair(N0, N0 + 1)
with Guard():
    e("s_waitcnt vmcnt(8)")
q_lo, q_hi = cil.run(C_WQ, 8)
with Guard():
    e(f"s_mov_b32 s63, {OPT['spin']}")
    e("s_branch L_ch_mpchk")
    lg = poll_begin()
    mp_loads()
    e.label("L_ch_mpchk")
    e("s_waitcnt vmcnt(0)")
    poll_end_tags(lg, [MPL + 2 * k + 1 for k in range(16)], C_T, C_T + 1)
stamp(3)
for c_ in range(2):
    for h_ in range(2):
        r0 = MPL + 4 * c_ + 2 * h_
        e(f"v_add_f32 v{r0}, v{r0}, v{r0+8}")
        e(f"v_add_f32 v{r0+16}, v{r0+16}, v{r0+24}")
        e(f"v_add_f32 v{C_MP+2*c_+h_}, v{r0}, v{r0+16}")
rnd_pair(C_MP, C_MP + 1)
rnd_pair(C_MP + 2, C_MP + 3)
for k in range(2): e(f"v_add_f32 v{C_MP+2+k}, 1.0, v{C_MP+2+k}")
rnd_pair(C_MP + 2, C_MP + 3)
for k in range(2): e(f"v_mul_f32 v{N0+k}, v{N0+k}, v{C_MP+2+k}")
rnd_pair(N0, N0 + 1)
for k in range(2): e(f"v_add_f32 v{N0+k}, v{N0+k}, v{C_MP+k}")
e(f"v_cvt_pk_bf16_f32 v{N0}, v{N0}, v{N0+1}")
c_distribute(N0)
e(f"s_lshl_b32 s46, s57, 15")
e(f"s_lshl_b32 s54, s58, 9")
e(f"s_add_u32 s46, s46, s54")
e(f"s_add_u32 s46, s46, 0x{QP_IN:x}")
e(f"v_add_u32 v3, s46, v{C_AV}")
e("s_waitcnt lgkmcnt(0)")
c_gemv(q_lo, q_hi, C_T)
e(f"v_mov_b32 v{C_T+1}, s59")
with Guard():
    e(f"global_store_dwordx2 v3, v[{C_T}:{C_T+1}], s[34:35] sc1")
stamp(4)
e.flush()
e("s_cmp_lt_u32 s60, 192")
e("s_cbranch_scc1 L_ch_gemvA_ret")
e("s_mov_b32 s61, 1")
e("s_branch L_ch_gemvA")
e.label("L_ch_gemvA_ret")
QQ = 16
e(f"""
s_lshl_b32 s46, s51, 12
s_add_u32 s46, s46, 0x{QP_IN:x}
v_add_u32 v3, s46, v2
""")
with Guard():
    lg = poll_begin()
    for kq in range(4):
        e(f"s_add_u32 s44, s34, {kq*32768}")
        e("s_addc_u32 s45, s35, 0")
        for j in range(4):
            e(f"global_load_dwordx4 {vr(QQ+16*kq+4*j)}, v3, s[44:45] offset:{1024*j} sc1")
    e("s_waitcnt vmcnt(0)")
    poll_end_tags(lg, [QQ + 2 * k + 1 for k in range(32)], C_T, C_T + 1)
for k in range(8):
    e(f"v_add_f32 v{QQ+2*k}, v{QQ+2*k}, v{QQ+16+2*k}")
    e(f"v_add_f32 v{QQ+32+2*k}, v{QQ+32+2*k}, v{QQ+48+2*k}")
for k in range(8):
    e(f"v_add_f32 v{QQ+2*k}, v{QQ+2*k}, v{QQ+32+2*k}")
for j in range(4):
    e(f"v_cvt_pk_bf16_f32 v{QQ+4*j}, v{QQ+4*j}, v{QQ+4*j+2}")
for j in range(4):
    e(f"ds_write_b32 v{C_VW}, v{QQ+4*j} offset:{L_QB+256*j}")
e("v_mov_b32 v3, 1")
e("s_waitcnt lgkmcnt(0)")
e(f"ds_write_b32 v1, v3 offset:{L_FLAG}")
stamp(6)
e("s_setprio 0")
e(f"""
v_lshrrev_b32 v14, 5, v0
s_lshl_b32 s46, s51, 2
v_add_u32 v15, s46, v14
s_movk_i32 s46, 14336
v_mul_lo_u32 v{F_A}, v15, s46
v_and_b32 v3, 31, v0
v_lshl_add_u32 v{F_A}, v3, 4, v{F_A}
s_lshl_b32 s46, s52, 9
s_add_u32 s46, s46, 0x{O_IN:x}
v_add_u32 v{F_A}, s46, v{F_A}
v_add_u32 v{F_A+1}, 28672, v{F_A}
v_lshlrev_b32 v{F_A+2}, 9, v15
s_lshl_b32 s46, s52, 4
s_add_u32 s46, s46, 0x{ML_IN:x}
v_add_u32 v{F_A+2}, s46, v{F_A+2}
v_lshlrev_b32 v14, 6, v14
""")
lg = poll_begin()
e("s_sleep 1")
for rd in range(2):
    for j in range(4):
        e(f"ds_read_b128 {vr(WM+16*rd+4*j)}, v14 offset:{L_WML+128*rd+16*j}")
e("s_waitcnt lgkmcnt(0)")
e(f"v_min3_f32 v3, v{WM+1}, v{WM+3}, v{WM+5}")
for rd in range(2):
    for w in range(3 if rd == 0 else 0, 7, 2):
        if w + 1 < 7: e(f"v_min3_f32 v3, v3, v{WM+16*rd+2*w+1}, v{WM+16*rd+2*w+3}")
        else: e(f"v_min_f32 v3, v3, v{WM+16*rd+2*w+1}")
e("v_cmp_ngt_f32 vcc, v3, 0")
e(f"s_cbranch_vccnz {lg[0]}")
e.label(lg[1])
e(f"s_mov_b32 s46, 0x{LOG2E:x}")
for rd in range(2):
    W_ = WM + 16 * rd; MM = F_A + 4 + 4 * rd
    e(f"v_max3_f32 v{MM}, v{W_}, v{W_+2}, v{W_+4}")
    e(f"v_max3_f32 v{MM}, v{MM}, v{W_+6}, v{W_+8}")
    e(f"v_max3_f32 v{MM}, v{MM}, v{W_+10}, v{W_+12}")
    for w in range(7): e(f"v_sub_f32 v{F_F+7*rd+w}, v{W_+2*w}, v{MM}")
    for w in range(7): e(f"v_mul_f32 v{F_F+7*rd+w}, s46, v{F_F+7*rd+w}")
    for w in range(7): e(f"v_exp_f32 v{F_F+7*rd+w}, v{F_F+7*rd+w}")
    e(f"v_mul_f32 v{MM+1}, v{F_F+7*rd}, v{W_+1}")
    for w in range(1, 7): e(f"v_fmac_f32 v{MM+1}, v{F_F+7*rd+w}, v{W_+2*w+1}")
    e(f"v_mov_b32 v{MM+2}, s59")
    e(f"v_mov_b32 v{MM+3}, 0")
with Guard():
    e("s_mov_b32 exec_lo, 1")
    e("s_mov_b32 exec_hi, 1")
    e(f"global_store_dwordx4 v{F_A+2}, {vr(F_A+4)}, s[34:35] sc1")
    e(f"global_store_dwordx4 v{F_A+2}, {vr(F_A+8)}, s[34:35] offset:1024 sc1")
    e("s_mov_b64 exec, -1")
    e("s_setprio 3")
    e("s_barrier")
for rd in range(2):
    for w in range(7):
        e(f"ds_read_b128 {vr(F_R+28*rd+4*w)}, v2 offset:{L_RED+2048*w+1024*rd}")
for rd in range(2):
    e(f"s_waitcnt lgkmcnt({7*(1-rd)})")
    R0 = F_R + 28 * rd
    for k in range(4): e(f"v_mul_f32 v{R0+k}, v{R0+k}, v{F_F+7*rd}")
    for k in range(4): e(f"v_mul_f32 v{R0+4+k}, v{R0+4+k}, v{F_F+7*rd+1}")
    for w in range(2, 7):
        for k in range(4):
            e(f"v_fmac_f32 v{R0+4*(w%2)+k}, v{R0+4*w+k}, v{F_F+7*rd+w}")
    for k in range(4): e(f"v_add_f32 v{R0+k}, v{R0+k}, v{R0+4+k}")
    with Guard():
        e(f"global_store_dwordx4 v{F_A+rd}, {vr(R0)}, s[34:35] sc1")
with Guard():
    stamp(5)
    e("s_branch L_done")
if OPT["dry"] and OPT["cdry"]:
    e("s_setprio 3")
    e("s_branch L_chain_dry_ret")

e.raw(".p2align 6")
e.label("L_tail_compute")
M_ = T_T; TT = T_T + 3
def ml_phase(pm, W):
    e(f"v_mov_b32 v{T_ML+4}, 0xff800000")
    e(f"v_mov_b32 v{T_ML+5}, 0")
    e(f"v_mov_b32 v{T_ML+6}, s59")
    with Guard():
        lg = poll_begin()
        e("s_sleep 2")
        e(f"global_load_dwordx4 {vr(T_ML)}, v{pm}, s[34:35] sc1")
        e("s_mov_b32 exec_hi, 0xffff")
        e(f"global_load_dwordx4 {vr(T_ML+4)}, v{pm}, s[34:35] offset:256 sc1")
        e("s_mov_b64 exec, -1")
        e("s_waitcnt vmcnt(0)")
        e(f"v_cmp_ne_u32 vcc, s59, v{T_ML+2}")
        e(f"v_cmp_ne_u32 s[44:45], s59, v{T_ML+6}")
        e("s_or_b64 vcc, vcc, s[44:45]")
        e(f"s_cbranch_vccnz {lg[0]}")
        e.label(lg[1])
    e(f"v_max_f32 v{M_}, v{T_ML}, v{T_ML+4}")
    red_plain("v_max_f32", M_, TT, [3, 2, 4, 5])
    e(f"s_mov_b32 s46, 0x{LOG2E:x}")
    e(f"v_sub_f32 v{W}, v{T_ML}, v{M_}")
    e(f"v_sub_f32 v{W+1}, v{T_ML+4}, v{M_}")
    e(f"v_mul_f32 v{W}, s46, v{W}")
    e(f"v_mul_f32 v{W+1}, s46, v{W+1}")
    e(f"v_exp_f32 v{W}, v{W}")
    e(f"v_exp_f32 v{W+1}, v{W+1}")
    e(f"v_mul_f32 v{M_}, v{W}, v{T_ML+1}")
    e(f"v_fmac_f32 v{M_}, v{W+1}, v{T_ML+5}")
    red_plain("v_add_f32", M_, TT, [3, 2, 4, 5])
    e(f"v_rcp_f32 v{TT}, v{M_}")
    e(f"v_fma_f32 v{M_}, -v{M_}, v{TT}, 1.0")
    e(f"v_fma_f32 v{TT}, v{M_}, v{TT}, v{TT}")
    e(f"v_mul_f32 v{W}, v{W}, v{TT}")
    e(f"v_mul_f32 v{W+1}, v{W+1}, v{TT}")

def o_poll(sets):
    for (po, po2, O) in sets:
        for k in range(4): e(f"v_mov_b32 v{O+4+k}, 0")
    with Guard():
        lg = poll_begin()
        for (po, po2, O) in sets:
            e(f"global_load_dwordx4 {vr(O)}, v{po}, s[34:35] sc1")
        e("s_mov_b32 exec_hi, 0xffff")
        for (po, po2, O) in sets:
            e(f"global_load_dwordx4 {vr(O+4)}, v{po2}, s[34:35] sc1")
        e("s_mov_b64 exec, -1")
        e("s_waitcnt vmcnt(0)")
        poll_end(lg, [O + k for (po, po2, O) in sets for k in range(8)], T_T)

def o_comp(W, O, lo_hi, first):
    for k in range(4): e(f"v_mul_f32 v{O+k}, v{W}, v{O+k}")
    for k in range(4): e(f"v_fmac_f32 v{O+k}, v{W+1}, v{O+4+k}")
    red_T32n([(O, O + 2), (O + 1, O + 3)])
    red_T16(O, O + 1)
    red_plain("v_add_f32", O, TT, [3, 2])
    e(f"v_mov_b32 v{TT}, v{O}")
    e(f"v_permlane16_swap_b32 v{O}, v{TT}")
    e(f"v_cvt_pk_bf16_f32 v{O}, v{O}, v{TT}")
    for k in range(8):
        e(f"v_readlane_b32 s{64+k}, v{O}, {(k>>1) + 32*(k&1)}")
    for k in range(8):
        for r in range(4):
            for hf in range(2):
                a_ = T_ACC + 2 * r + hf
                c = "0" if (k == 0 and first) else f"v{a_}"
                e(f"v_dot2_f32_bf16 v{a_}, v{lo_hi(k, r, hf)}, s{64+k}, {c}")

for k in range(8): e(f"v_mov_b32 v{T_ACC+k}, 0")
with Guard():
    e("s_cmp_eq_u32 s75, 0")
    e("s_cbranch_scc1 L_t_s1done")
ml_phase(T_PM, T_WA)
with Guard():
    e("s_cmp_eq_u32 s76, 0")
    e("s_cbranch_scc1 L_t_s1a")
ml_phase(T_PMB, T_WB)
o_poll([(T_PO, T_PO2, T_O), (T_POB, T_POB2, T_ML)])
o_comp(T_WB, T_ML, lambda k, r, hf: ((g_lo, g_hi) if k < 4 else (u_lo, u_hi))[hf][(k % 4, r)], False)
e.flush()
with Guard():
    e("s_branch L_t_s1b")
e.label("L_t_s1a")
o_poll([(T_PO, T_PO2, T_O)])
e.flush()
e.label("L_t_s1b")
stamp(2, False)
o_comp(T_WA, T_O, lambda k, r, hf: (wo_lo, wo_hi)[hf][(k, r)], False)
e.flush()
e.label("L_t_s1done")

def cu_reduce_store(inbox, tagl):
    e(f"ds_write_b128 v{T_RW}, {vr(T_ACC)} offset:{L_RED}")
    e(f"ds_write_b128 v{T_RW}, {vr(T_ACC+4)} offset:{L_RED+16}")
    with Guard():
        e("s_waitcnt lgkmcnt(0)")
        e("s_barrier")
        e("s_cmp_gt_u32 s3, 1")
        e(f"s_cbranch_scc1 {tagl}")
    regs = [200, 204, 208, 212, 216, 220, 224, 228]
    for w in range(8):
        e(f"ds_read_b128 {vr(regs[w])}, v{T_RR} offset:{L_RED+2048*w}")
    e(f"v_add_u32 v{TT}, 0x{inbox:x}, v{T_ST}")
    e("s_waitcnt lgkmcnt(0)")
    for a, b in ((0, 1), (2, 3), (4, 5), (6, 7), (0, 2), (4, 6), (0, 4)):
        for k in range(4):
            e(f"v_add_f32 v{regs[a]+k}, v{regs[a]+k}, v{regs[b]+k}")
    with Guard():
        store_mode(f"global_store_dwordx4 v{TT}, {vr(regs[0])}, s[34:35]")

def gather16(inbox, dst, nprod):
    e(f"v_add_u32 v{TT}, 0x{inbox:x}, v{T_A2}")
    if nprod < 32:
        for k in range(4): e(f"v_mov_b32 v{T_O+4+k}, 0")
    with Guard():
        lg = poll_begin()
        e(f"global_load_dwordx4 {vr(T_O)}, v{TT}, s[34:35] sc1")
        if nprod < 32: e("s_mov_b32 exec_hi, 0xffff")
        e(f"global_load_dwordx4 {vr(T_O+4)}, v{TT}, s[34:35] offset:1024 sc1")
        if nprod < 32: e("s_mov_b64 exec, -1")
        e("s_waitcnt vmcnt(0)")
        poll_end(lg, [T_O + k for k in range(8)], T_T)
    for k in range(4): e(f"v_add_f32 v{T_O+k}, v{T_O+k}, v{T_O+4+k}")
    red_T32n([(T_O, T_O + 2), (T_O + 1, T_O + 3)])
    red_T16(T_O, T_O + 1)
    red_plain("v_add_f32", T_O, TT, [3, 2])
    rnd_bf16(f"v{dst}", f"v{T_O}")

cu_reduce_store(A_IN, "L_t_s3")
stamp(3, False)
with Guard():
    e("s_cmp_lg_u32 s3, 0")
    e("s_cbranch_scc1 L_t_s3")
gather16(A_IN, T_O, 32)
e(f"v_mul_f32 v{T_O}, v{T_O}, v{T_GA}")
rnd_bf16(f"v{T_O}", f"v{T_O}")
e(f"v_add_f32 v{T_O}, v{T_O}, v{T_X}")
rnd_bf16(f"v{T_X1}", f"v{T_O}")
with Guard():
    setexec(0x000f000f, 0x000f000f)
    store_mode(f"global_store_dword v{T_XS}, v{T_X1}, s[34:35]")
    e("s_cmp_lg_u32 s53, 0")
    e("s_cbranch_scc1 L_t_nonN")
    e(f"v_mov_b32 v{TT}, s59")
    e("s_mov_b64 exec, 1")
    e(f"global_store_dword v1, v{TT}, s[34:35] offset:{NONCE} sc1")
    e.label("L_t_nonN")
    fullexec()
stamp(4, False)
e.flush()
e.label("L_t_s3")
with Guard():
    e("s_cmp_ge_u32 s53, 28")
    e("s_cbranch_scc1 L_t_s4")
XF = T_T + 8; XO = T_ML
L_ST = 16
with Guard():
    lg = poll_begin()
    e(f"global_load_dword v{XO}, v{T_XO}, s[34:35] sc1")
    e("s_waitcnt vmcnt(0)")
    e(f"v_cmp_eq_u32 vcc, -1, v{XO}")
    e(f"s_cbranch_vccnz {lg[0]}")
    e.label(lg[1])
stamp(5, False)
e(f"v_mul_f32 v{XF}, v{XO}, v{XO}")
e(f"v_mov_b32 v{XF+1}, v{XO}")
e(f"v_mul_f32 v{XO}, v{XO}, v{T_CB}")
fl = [f"v_permlane32_swap_b32 v{XF+1}, v{XF}", f"v_add_f32 v{XF+1}, v{XF+1}, v{XF}", f"v_mov_b32 v{XF+2}, v{XF+1}",
      f"v_permlane16_swap_b32 v{XF+1}, v{XF+2}", f"v_add_f32 v{XF+1}, v{XF+1}, v{XF+2}",
      f"v_add_f32_dpp v{XF+1}, v{XF+1}, v{XF+1} {ror(8)}", f"v_add_f32_dpp v{XF+1}, v{XF+1}, v{XF+1} {ror(4)}",
      f"v_add_f32_dpp v{XF+1}, v{XF+1}, v{XF+1} quad_perm:[2,3,0,1] {DPPALL}",
      f"v_add_f32_dpp v{XF+1}, v{XF+1}, v{XF+1} quad_perm:[1,0,3,2] {DPPALL}",
      f"v_lshrrev_b32 v{XF+2}, 5, v0", f"v_lshlrev_b32 v{XF+2}, 5, v{XF+2}", "s_lshl_b32 s46, s3, 2", f"v_add_u32 v{XF+2}, s46, v{XF+2}"]
ffn_pass(XO, L_RED2, fl)
setexec(1, 1)
e(f"ds_write_b32 v{XF+2}, v{XF+1} offset:{L_WML}")
fullexec()
with Guard():
    e("s_waitcnt lgkmcnt(0)")
    e("s_barrier")
for j in range(4):
    e(f"ds_read_b128 {vr(XF+4*j)}, v1 offset:{L_WML+16*j}")
G_ = T_T; U_ = T_T + 1
e(f"ds_read_b32 v{G_}, v{T_R2R} offset:{L_RED2}")
e(f"ds_read_b32 v{U_}, v{T_R2R} offset:{L_RED2+256}")
e("s_waitcnt lgkmcnt(2)")
S_ = XF; Q_ = XF + 8; T_ = XF + 1; V_ = XF + 2
for base in (S_, Q_):
    e(f"v_add_f32 v{base}, v{base}, v{base+1}")
    e(f"v_add_f32 v{base+2}, v{base+2}, v{base+3}")
    e(f"v_add_f32 v{base+4}, v{base+4}, v{base+5}")
    e(f"v_add_f32 v{base+6}, v{base+6}, v{base+7}")
e("s_waitcnt lgkmcnt(0)")
e(f"v_permlane32_swap_b32 v{G_}, v{U_}")
for base in (S_, Q_):
    e(f"v_add_f32 v{base}, v{base}, v{base+2}")
    e(f"v_add_f32 v{base+4}, v{base+4}, v{base+6}")
e(f"v_add_f32 v{G_}, v{G_}, v{U_}")
e(f"v_mov_b32 v{TT}, v{G_}")
for base in (S_, Q_):
    e(f"v_add_f32 v{base}, v{base}, v{base+4}")
e(f"v_permlane16_swap_b32 v{G_}, v{TT}")
e(f"v_add_f32 v{G_}, v{G_}, v{TT}")
e(f"v_mul_f32 v{S_}, 0x3b000000, v{S_}")
e(f"v_mul_f32 v{Q_}, 0x3b000000, v{Q_}")
e(f"v_fma_f32 v{Q_}, -v{S_}, v{S_}, v{Q_}")
e(f"v_add_f32_dpp v{G_}, v{G_}, v{G_} {ror(8)}")
e(f"v_max_f32 v{Q_}, 0, v{Q_}")
e(f"v_cvt_pk_bf16_f32 v{S_}, v{S_}, v{Q_}")
e(f"v_and_b32 v{Q_}, 0xffff0000, v{S_}")
e(f"v_lshlrev_b32 v{S_}, 16, v{S_}")
e(f"v_add_f32 v{Q_}, 0x3727c5ac, v{Q_}")
e(f"v_fma_f32 v{G_}, -v{S_}, v{T_P}, v{G_}")
rnd_bf16(f"v{Q_}", f"v{Q_}")
e(f"v_sqrt_f32 v{Q_}, v{Q_}")
rnd_bf16(f"v{Q_}", f"v{Q_}")
e(f"v_rcp_f32 v{T_}, v{Q_}")
e(f"v_fma_f32 v{G_}, v{G_}, v{T_}, v{T_P+1}")
rnd_bf16(f"v{G_}", f"v{G_}")
e(f"v_mov_b32 v{U_}, v{G_}")
e(f"v_permlane32_swap_b32 v{G_}, v{U_}")
e(f"v_mul_f32 v{TT}, v{G_}, v{G_}")
e(f"v_mov_b32 v{TT+1}, 0x3d372713")
e(f"v_fma_f32 v{TT}, v{TT}, v{TT+1}, 1.0")
e(f"v_mul_f32 v{TT}, v{TT}, v{G_}")
e(f"v_mul_f32 v{TT}, 0xc0135761, v{TT}")
e(f"v_exp_f32 v{TT}, v{TT}")
e(f"v_add_f32 v{TT}, 1.0, v{TT}")
e(f"v_rcp_f32 v{TT}, v{TT}")
e(f"v_mul_f32 v{G_}, v{G_}, v{TT}")
rnd_bf16(f"v{G_}", f"v{G_}")
e(f"v_mul_f32 v{G_}, v{G_}, v{U_}")
e(f"v_mov_b32_dpp v{U_}, v{G_} quad_perm:[1,1,3,3] {DPPALL}")
e(f"v_cvt_pk_bf16_f32 v{G_}, v{G_}, v{U_}")
for k in range(4): e(f"v_readlane_b32 s{64+k}, v{G_}, {2*k}")
dots(d_lo, d_hi, 4, T_ACC, lambda k: f"s{64+k}")
cu_reduce_store(F_IN, "L_done")
stamp(6)
e.flush()
e.label("L_t_s4")
with Guard():
    e("s_cmp_lg_u32 s3, 0")
    e("s_cbranch_scc1 L_done")
gather16(F_IN, T_O, 28)
e(f"v_mul_f32 v{T_O}, v{T_O}, v{T_GB}")
rnd_bf16(f"v{T_O}", f"v{T_O}")
e(f"v_add_f32 v{T_O}, v{T_O}, v{T_X1}")
e(f"v_mov_b32 v{TT}, v{T_O}")
e(f"v_permlane16_swap_b32 v{T_O}, v{TT}")
e(f"v_cvt_pk_bf16_f32 v{T_O}, v{T_O}, v{TT}")
with Guard():
    setexec(0xf, 0xf)
    e(f"global_store_dword v{T_OUT}, v{T_O}, s[30:31]")
    stamp(7)
    e("s_branch L_done")
if OPT["dry"]:
    e("s_branch L_tail_dry_ret")

e.label("L_done")
if PROFILE == 1:
    e("s_waitcnt vmcnt(0) lgkmcnt(0)")
    e("s_memrealtime s[96:97]")
    e("s_lshl_b32 s46, s2, 3")
    e("s_add_u32 s46, s46, s3")
    e("s_lshl_b32 s46, s46, 7")
    e(f"s_add_u32 s46, s46, 0x{TS_BASE:x}")
    e("s_mov_b64 exec, 1")
    e("v_mov_b32 v1, s46")
    e("s_waitcnt lgkmcnt(0)")
    for k in range(9):
        e(f"v_mov_b32 v2, s{80+2*k}")
        e(f"v_mov_b32 v3, s{81+2*k}")
        e(f"global_store_dwordx2 v1, v[2:3], s[34:35] offset:{8*k}")
        e("s_nop 1")
if PROFILE == 3:
    e("s_waitcnt vmcnt(0) lgkmcnt(0)")
    e("s_memrealtime s[96:97]")
    e("s_mov_b64 exec, 1")
    e("v_mov_b32 v1, 0")
    e("s_waitcnt lgkmcnt(0)")
    for (wg, wv, lst) in ((7, 0, [(1, 0), (2, 1), (3, 2), (4, 3), (5, 4), (6, 5), (7, 6), (8, 7)]),
                          (0, 0, [(1, 8), (2, 9), (3, 10), (4, 11), (6, 12), (5, 13)]),
                          (0, 1, [(2, 14), (4, 15)])):
        l = e.newlab("Lpr")
        e(f"s_cmp_lg_u32 s2, {wg}")
        e(f"s_cbranch_scc1 {l}")
        e(f"s_cmp_lg_u32 s3, {wv}")
        e(f"s_cbranch_scc1 {l}")
        for k, d in lst:
            e(f"s_sub_u32 s46, s{80+2*k}, s80")
            e("v_mov_b32 v2, s46")
            e(f"global_store_dword v1, v2, s[32:33] offset:{4*d}")
            e("s_nop 1")
        e.label(l)
e.label("L_end")
e("s_endpgm")
e.raw(f".fill (24576+256-(.-{KNAME}))/4, 4, 0xbf810000")
e.raw(f""".section .rodata,"a"
.p2align 6
.amdhsa_kernel {KNAME}
  .amdhsa_next_free_vgpr 256
  .amdhsa_next_free_sgpr 102
  .amdhsa_accum_offset 256
  .amdhsa_group_segment_fixed_size 0
  .amdhsa_kernarg_size 112
  .amdhsa_user_sgpr_count 2
  .amdhsa_user_sgpr_kernarg_segment_ptr 1
  .amdhsa_system_sgpr_workgroup_id_x 1
.end_amdhsa_kernel""")
sys.stdout.write(e.text())
sys.stderr.write(f"maxv {e.maxv} maxs {e.maxs} lines {len(e.lines)}\n")
```

```python
import sys, os
sys.path.insert(0, os.path.dirname(os.path.abspath(__file__)))
from em import Em

OPT = dict(profile=0, depth=2, tdepth=8, dry=1, ntw="nt", nts="nt", force_global=0, spin=1 << 18, pre=1, tp=0, tbar=0, ug=9, cpf=1, cdry=0)
for a in sys.argv[1:]:
    k, v = a.split("=")
    OPT[k] = int(v) if v.lstrip("-").isdigit() else v
PROFILE = OPT["profile"]
DEPTH = OPT["depth"]
NT = OPT["ntw"].replace("+", " ") if OPT["ntw"] != "-" else ""
NTS = OPT["nts"].replace("+", " ") if OPT["nts"] != "-" else ""
KNAME = "adaLN_cond__gqa_block_cached__geglu_ffn__decode_kernel"

NONCE = 0x0
MP_IN = 0x1000
RP_IN = 0x9000
QP_IN = 0x19000
ML_IN = 0x39000
X1_IN = 0x3D000
A_IN = 0x3E000
F_IN = 0x4E000
O_IN = 0x5E000
TS_BASE = 0x8000000
TAGC = 0x9e3779b9
L_FLAG = 0; L_WML = 64; L_QB = 512; L_VEC = 1536; L_RED = 2048; L_RED2 = 18432; L_RED3 = 22528; L_RED4 = 26624; LDS_SIZE = 30720
LOG2E = 0x3fb8aa3b
SCALE = 0x3db504f3

e = Em()
DPPALL = "row_mask:0xf bank_mask:0xf"

def ror(n, bm=0xf):
    n %= 16
    if n == 0: return f"quad_perm:[0,1,2,3] row_mask:0xf bank_mask:0x{bm:x}"
    return f"row_ror:{n} row_mask:0xf bank_mask:0x{bm:x}"

class Guard:
    def __enter__(self):
        self.l = e.newlab("Lg")
        e(f"s_cbranch_execz {self.l}")
    def __exit__(self, *a):
        e.label(self.l)

def setexec(lo, hi):
    e(f"s_and_b32 exec_lo, s6, 0x{lo:x}")
    e(f"s_and_b32 exec_hi, s7, 0x{hi:x}")

def fullexec(): e("s_mov_b64 exec, s[6:7]")

def dry_enter():
    e("s_mov_b64 s[6:7], 0")
    e("s_mov_b64 exec, 0")

def dry_leave():
    e("s_mov_b64 s[6:7], -1")
    e("s_mov_b64 exec, -1")

def stamp(k, alt=None):
    if PROFILE and (alt is None or bool(alt) == bool(OPT["tp"])):
        e(f"s_memrealtime s[{80+2*k}:{81+2*k}]")

def rnd_bf16(dst, src):
    e(f"v_cvt_pk_bf16_f32 {dst}, {src}, {src}")
    e(f"v_lshlrev_b32 {dst}, 16, {dst}")

def rnd_pair(a, b):
    e(f"v_cvt_pk_bf16_f32 v{b}, v{a}, v{b}")
    e(f"v_lshlrev_b32 v{a}, 16, v{b}")
    e(f"v_and_b32 v{b}, 0xffff0000, v{b}")

def poll_begin():
    l = e.newlab("Lp"); g = e.newlab("Lq")
    e(f"s_mov_b32 s63, {OPT['spin']}")
    e.flush()
    e.label(l)
    e("s_sub_u32 s63, s63, 1")
    e(f"s_cbranch_scc1 {g}")
    return l, g

def bad_sent(regs, tmp):
    rs = list(regs); cur = rs.pop(0)
    while rs:
        if len(rs) >= 2: e(f"v_max3_u32 v{tmp}, v{cur}, v{rs[0]}, v{rs[1]}"); rs = rs[2:]
        else: e(f"v_max_u32 v{tmp}, v{cur}, v{rs[0]}"); rs = rs[1:]
        cur = tmp
    return cur

def poll_end(lg, regs, tmp):
    cur = bad_sent(regs, tmp)
    e(f"v_cmp_eq_u32 vcc, -1, v{cur}")
    e(f"s_cbranch_vccnz {lg[0]}")
    e.label(lg[1])

def tag_minmax(tags, t0, t1):
    for op, t in (("min", t0), ("max", t1)):
        rs = list(tags); cur = rs.pop(0)
        while rs:
            if len(rs) >= 2: e(f"v_{op}3_u32 v{t}, v{cur}, v{rs[0]}, v{rs[1]}"); rs = rs[2:]
            else: e(f"v_{op}_u32 v{t}, v{cur}, v{rs[0]}"); rs = rs[1:]
            cur = t

def poll_end_tags(lg, tags, t0, t1):
    tag_minmax(tags, t0, t1)
    e(f"v_cmp_ne_u32 vcc, s59, v{t0}")
    e(f"v_cmp_ne_u32 s[44:45], s59, v{t1}")
    e("s_or_b64 vcc, vcc, s[44:45]")
    e(f"s_cbranch_vccnz {lg[0]}")
    e.label(lg[1])

def vr(b, n=4): return f"v[{b}:{b+n-1}]"

def red_T32(a, b):
    e(f"v_permlane32_swap_b32 v{a}, v{b}")
    e(f"v_add_f32 v{a}, v{a}, v{b}")

def red_T16(a, b):
    e(f"v_permlane16_swap_b32 v{a}, v{b}")
    e(f"v_add_f32 v{a}, v{a}, v{b}")

def red_T32n(pairs):
    for a, b in pairs: e(f"v_permlane32_swap_b32 v{a}, v{b}")
    for a, b in pairs: e(f"v_add_f32 v{a}, v{a}, v{b}")

def red_T16n(pairs):
    for a, b in pairs: e(f"v_permlane16_swap_b32 v{a}, v{b}")
    for a, b in pairs: e(f"v_add_f32 v{a}, v{a}, v{b}")

def red_T8(dst, a, b):
    e(f"v_add_f32_dpp v{dst}, v{a}, v{a} {ror(8, 0x3)}")
    e(f"v_add_f32_dpp v{dst}, v{b}, v{b} {ror(8, 0xc)}")

def red_plain(op, a, t, bits):
    for b in bits:
        if b == 5:
            e(f"v_mov_b32 v{t}, v{a}")
            e(f"v_permlane32_swap_b32 v{a}, v{t}")
            e(f"{op} v{a}, v{a}, v{t}")
        elif b == 4:
            e(f"v_mov_b32 v{t}, v{a}")
            e(f"v_permlane16_swap_b32 v{a}, v{t}")
            e(f"{op} v{a}, v{a}, v{t}")
        elif b == 3:
            e(f"{op}_dpp v{a}, v{a}, v{a} {ror(8)}")
        elif b == 2:
            e(f"{op}_dpp v{a}, v{a}, v{a} {ror(4)}")
        elif b == 1:
            e(f"{op}_dpp v{a}, v{a}, v{a} quad_perm:[2,3,0,1] {DPPALL}")
        elif b == 0:
            e(f"{op}_dpp v{a}, v{a}, v{a} quad_perm:[1,0,3,2] {DPPALL}")

def ln_stats(xr, t0, packed=True):
    S, Q, T, U = t0, t0 + 1, t0 + 2, t0 + 3
    if packed:
        e("s_mov_b32 s64, 0x3f803f80")
        for k in range(4):
            e(f"v_dot2_f32_bf16 v{S}, v{xr+k}, s64, {'0' if k == 0 else f'v{S}'}")
            e(f"v_dot2_f32_bf16 v{Q}, v{xr+k}, v{xr+k}, {'0' if k == 0 else f'v{Q}'}")
    else:
        e(f"v_add_f32 v{S}, v{xr}, v{xr+1}")
        e(f"v_mul_f32 v{Q}, v{xr}, v{xr}")
        e(f"v_add_f32 v{T}, v{xr+2}, v{xr+3}")
        e(f"v_mul_f32 v{U}, v{xr+1}, v{xr+1}")
        e(f"v_add_f32 v{S}, v{S}, v{xr+4}")
        e(f"v_fmac_f32 v{Q}, v{xr+2}, v{xr+2}")
        e(f"v_add_f32 v{T}, v{T}, v{xr+5}")
        e(f"v_fmac_f32 v{U}, v{xr+3}, v{xr+3}")
        e(f"v_add_f32 v{S}, v{S}, v{xr+6}")
        e(f"v_fmac_f32 v{Q}, v{xr+4}, v{xr+4}")
        e(f"v_add_f32 v{T}, v{T}, v{xr+7}")
        e(f"v_fmac_f32 v{U}, v{xr+5}, v{xr+5}")
        e(f"v_add_f32 v{S}, v{S}, v{T}")
        e(f"v_fmac_f32 v{Q}, v{xr+6}, v{xr+6}")
        e(f"v_fmac_f32 v{U}, v{xr+7}, v{xr+7}")
        e(f"v_add_f32 v{Q}, v{Q}, v{U}")
    red_T32(S, Q)
    red_plain("v_add_f32", S, T, [4, 3, 2, 1, 0])
    e(f"v_readlane_b32 s64, v{S}, 0")
    e(f"v_readlane_b32 s65, v{S}, 32")
    e(f"v_mov_b32 v{T}, 0x3b000000")
    e(f"v_mul_f32 v{S}, s64, v{T}")
    e(f"v_mul_f32 v{Q}, s65, v{T}")
    e(f"v_fma_f32 v{Q}, -v{S}, v{S}, v{Q}")
    e(f"v_max_f32 v{Q}, 0, v{Q}")
    e(f"v_cvt_pk_bf16_f32 v{S}, v{S}, v{Q}")
    e(f"v_and_b32 v{Q}, 0xffff0000, v{S}")
    e(f"v_lshlrev_b32 v{S}, 16, v{S}")
    e(f"v_add_f32 v{Q}, 0x3727c5ac, v{Q}")
    rnd_bf16(f"v{Q}", f"v{Q}")
    e(f"v_sqrt_f32 v{Q}, v{Q}")
    rnd_bf16(f"v{Q}", f"v{Q}")
    e(f"v_rcp_f32 v{T}, v{Q}")
    e(f"v_fma_f32 v{U}, -v{Q}, v{T}, 1.0")
    e(f"v_fma_f32 v{T}, v{U}, v{T}, v{T}")
    e(f"v_readfirstlane_b32 s64, v{S}")
    e(f"v_readfirstlane_b32 s65, v{T}")
    e(f"v_readfirstlane_b32 s66, v{Q}")

def store_mode(instr_fmt):
    la = e.newlab("Ls"); lb = e.newlab("Ls")
    e.flush()
    e("s_cmp_lg_u32 s62, 0")
    e(f"s_cbranch_scc1 {la}")
    e(instr_fmt + " sc1")
    e(f"s_branch {lb}")
    e.label(la)
    e(instr_fmt)
    e.label(lb)
    e.nop(2)

class Interleaver:
    def __init__(self, spare): self.spare = spare
    def run(self, tile, npairs):
        lo = {}; hi = {}
        for k in range(npairs):
            for r in range(4):
                A_ = tile + 4 * (2 * k) + r; B_ = tile + 4 * (2 * k + 1) + r
                e(f"v_perm_b32 v{self.spare}, v{B_}, v{A_}, s48")
                e(f"v_perm_b32 v{B_}, v{B_}, v{A_}, s49")
                lo[(k, r)] = self.spare; hi[(k, r)] = B_
                self.spare = A_
        return lo, hi

def dots(lo, hi, npairs, acc, vec):
    for k in range(npairs):
        for r in range(4):
            for hf, tab in ((0, lo), (1, hi)):
                a = acc + 2 * r + hf
                c = "0" if k == 0 else f"v{a}"
                e(f"v_dot2_f32_bf16 v{a}, v{tab[(k,r)]}, {vec(k)}, {c}")

hdr = open(os.path.join(os.path.dirname(os.path.abspath(__file__)), "..", "cdna_kernels", KNAME[:-7] + ".s.ref")).read().split("\n")
for l in hdr:
    if l.startswith("; @launch"): break
    if l.startswith(";"): e.raw(l)
e.raw(f"; @launch grid=(256,1,1) block=(512,1,1) lds={LDS_SIZE}")
e.raw('.amdgcn_target "amdgcn-amd-amdhsa--gfx950"')
e.raw(".text")
e.raw(f".globl {KNAME}")
e.raw(".p2align 8")
e.raw(f".type {KNAME},@function")
e.raw(f"{KNAME}:")

e(f"""
s_cmp_ge_u32 s2, 0x100
s_cbranch_scc1 L_end
s_load_dwordx16 s[8:23], s[0:1], 0
s_load_dwordx8 s[24:31], s[0:1], 64
s_load_dwordx4 s[32:35], s[0:1], 96
""")
if OPT.get("wgxor", 0):
    e("s_lshr_b32 s3, s2, 3")
    e("s_and_b32 s3, s3, 7")
    e("s_xor_b32 s2, s2, s3")
if PROFILE:
    for k in range(82, 98): e(f"s_mov_b32 s{k}, 0")
stamp(0)
e(f"""
v_lshrrev_b32 v1, 6, v0
v_and_b32 v0, 63, v0
v_readfirstlane_b32 s3, v1
s_add_u32 s4, s2, {OPT.get("trot", 0)}
s_and_b32 s4, s4, 7
s_lshr_b32 s5, s2, 3
s_mov_b64 s[6:7], -1
v_mov_b32 v1, 0
v_lshlrev_b32 v2, 4, v0
""")
if OPT["cpf"]:
    e("s_getpc_b64 s[44:45]")
    e.label("L_pc1")
    e(f"s_sub_u32 s44, s44, L_pc1-{KNAME}")
    e("s_subb_u32 s45, s45, 0")
    e("s_mul_i32 s46, s3, 3072")
    e("v_add_u32 v3, s46, v2")
    for k in range(3):
        e(f"global_load_dwordx4 v[{16+4*k}:{19+4*k}], v3, s[44:45] offset:{1024*k}")
e(f"""
s_mov_b32 s48, 0x05040100
s_mov_b32 s49, 0x07060302
s_mul_i32 s51, s5, 7
s_add_u32 s60, s51, s4
s_mul_i32 s51, s60, 2341
s_lshr_b32 s51, s51, 16
s_mul_i32 s46, s51, 28
s_sub_u32 s52, s60, s46
s_xor_b32 s53, s5, {OPT.get("txor", 0)}
s_mov_b32 s47, 0
s_mov_b32 s62, 0
s_mov_b32 s38, 0x400000
s_mov_b32 s39, 0x20000
s_mov_b32 s42, 0x400000
s_mov_b32 s43, 0x20000
s_lshl_b32 s46, s51, 22
s_waitcnt lgkmcnt(0)
s_add_u32 s36, s10, s46
s_addc_u32 s37, s11, 0
s_and_b32 s37, s37, 0xffff
s_add_u32 s40, s12, s46
s_addc_u32 s41, s13, 0
s_and_b32 s41, s41, 0xffff
""")
stamp(7)
e(f"""
s_cmp_eq_u32 s4, 7
s_cbranch_scc1 L_tail_stream
""")
if OPT.get("tailonly", 0): e("s_branch L_done")
e(f"""
s_cmp_eq_u32 s3, 0
s_cbranch_scc1 L_chain
""")

KB = 64; VB = 160; DA = 32; DB = 48; ACC = 16; QB = 4; SR = 8; VOA = 63
NU = 6
e(f"""
s_sub_u32 s46, s3, 1
s_cmp_eq_u32 s52, 27
s_cselect_b32 s54, 3, 5
s_cselect_b32 s55, 4, 2
s_mul_i32 s56, s46, s54
s_min_u32 s57, s46, s55
s_add_u32 s56, s56, s57
s_mul_i32 s57, s52, 37
s_add_u32 s56, s56, s57
s_cmp_lt_u32 s46, s55
s_addc_u32 s54, s54, 0
s_lshl_b32 s55, s56, 12
v_bfe_u32 v3, v0, 2, 2
v_lshlrev_b32 v3, 8, v3
v_lshrrev_b32 v14, 4, v0
v_lshl_add_u32 v3, v14, 6, v3
v_and_b32 v14, 3, v0
v_lshl_add_u32 v3, v14, 4, v3
""")

def throttle(can_k, free_nv=None):
    l = e.newlab("Lt")
    e("s_cmp_lg_u32 s47, 0")
    e(f"s_cbranch_scc1 {l}")
    if free_nv is None: e(f"s_waitcnt vmcnt({DEPTH})")
    if can_k:
        e(f"ds_read_b32 v15, v1 offset:{L_FLAG}")
        e("s_waitcnt lgkmcnt(0)")
        e("v_readfirstlane_b32 s47, v15")
        e("s_cmp_eq_u32 s47, 0")
        e(f"s_cbranch_scc1 {l}")
        if free_nv is not None: e(f"s_waitcnt vmcnt({4*free_nv})")
        e("s_swappc_b64 s[98:99], s[100:101]")
    e.flush()
    e.label(l)

grp = 0
for tens in range(2):
    srd = 36 if tens == 0 else 40
    base = KB if tens == 0 else VB
    voff = "v3" if tens == 0 else "v2"
    for u in range(NU):
        if OPT["pre"] and grp == 0:
            e("s_cmp_ge_u32 s60, 64")
            e("s_cbranch_scc1 L_pre_a")
            e("s_barrier")
            e.label("L_pre_a")
        if grp == OPT["pre"]:
            if OPT["pre"]:
                e("s_cmp_lt_u32 s60, 64")
                e("s_cbranch_scc1 L_pre_b")
            e("s_barrier")
            if OPT["pre"]: e.label("L_pre_b")
            stamp(5)
        if u >= 3:
            e(f"s_cmp_gt_u32 s54, {u}")
            e(f"s_cselect_b32 s{srd+2}, 0x400000, 0")
        e(f"s_add_u32 s46, s55, {u*4096}")
        for j in range(4):
            e(f"buffer_load_dwordx4 {vr(base+16*u+4*j)}, {voff}, s[{srd}:{srd+3}], s46 offen offset:{j*1024} {NT}")
        grp += 1
        if grp == 1:
            for uu in range(3, NU):
                e(f"s_cmp_gt_u32 s54, {uu}")
                e(f"s_cselect_b32 s{69+uu}, 0, 0xff800000")
            e("s_getpc_b64 s[100:101]")
            e.label("L_pc0")
            e("s_add_u32 s100, s100, L_att_kphase-L_pc0")
            e("s_addc_u32 s101, s101, 0")
        if OPT["dry"] and grp == 2:
            l = e.newlab("Ld")
            e("s_cmp_lg_u32 s3, 7")
            e(f"s_cbranch_scc1 {l}")
            dry_enter()
            e("s_swappc_b64 s[98:99], s[100:101]")
            e("s_branch L_att_vphase")
            e.label("L_att_dry_ret")
            dry_leave()
            e.label(l)
        if grp >= 2 and grp < 2 * NU:
            if grp >= OPT.get("ug", 99): throttle(tens == 1, u + 1)
            else: throttle(tens == 1 and 4 * (u + 1) >= DEPTH)
stamp(1)
e("s_cmp_lg_u32 s47, 0")
e("s_cbranch_scc1 L_att_vphase")
lg = poll_begin()
e("s_sleep 1")
e(f"ds_read_b32 v15, v1 offset:{L_FLAG}")
e("s_waitcnt lgkmcnt(0)")
e("v_cmp_eq_u32 vcc, 0, v15")
e(f"s_cbranch_vccnz {lg[0]}")
e.label(lg[1])
e(f"s_waitcnt vmcnt({4*NU})")
e("s_swappc_b64 s[98:99], s[100:101]")
e("s_branch L_att_vphase")

C_X = 4; C_CP = 8; C_XP = 9; C_FL = 10; C_AV = 11; C_AD = 12; C_VW = 13
C_QA = 146; C_XA = 147; C_A = 16; C_WQ = 80; C_SP = 144; C_ONES = 148; C_MP = 152; C_VP = 168; C_ACC = 176; C_T = 184; MPL = 192
F_F = 64; F_A = 80; F_R = 96; WM = 160
e.label("L_chain")
e(f"""
s_setprio 3
global_load_dword v{C_FL}, v1, s[34:35] offset:{NONCE} sc1
s_lshr_b32 s57, s60, 6
v_lshlrev_b32 v{C_VW}, 2, v0
ds_write_b32 v{C_VW}, v1 offset:0
ds_write_b32 v{C_VW}, v1 offset:256
v_lshrrev_b32 v14, 3, v0
v_lshlrev_b32 v14, 4, v14
v_and_b32 v15, 7, v0
v_lshlrev_b32 v15, 4, v15
s_mov_b32 s44, s28
s_mov_b32 s45, s29
s_movk_i32 s61, 6144
s_and_b32 s54, s60, 15
s_lshr_b32 s55, s60, 4
s_lshl_b32 s56, s55, 13
s_lshl_b32 s46, s54, 9
s_add_u32 s56, s56, s46
s_add_u32 s56, s56, 0x{MP_IN:x}
s_lshl_b32 s54, s54, 7
s_cmp_lt_u32 s60, 64
s_cbranch_scc1 L_ch_isM
s_sub_u32 s46, s60, 64
s_and_b32 s54, s46, 31
s_lshr_b32 s55, s46, 5
s_lshl_b32 s56, s55, 14
s_lshl_b32 s46, s54, 9
s_add_u32 s56, s56, s46
s_add_u32 s56, s56, 0x{RP_IN:x}
s_lshl_b32 s54, s54, 7
s_add_u32 s54, s54, 2048
s_cmp_lt_u32 s60, 192
s_cbranch_scc1 L_ch_isM
s_sub_u32 s54, s60, 160
s_mov_b32 s55, 3
s_lshl_b32 s56, s54, 9
s_add_u32 s56, s56, 0x{QP_IN + 3*32768:x}
s_lshl_b32 s54, s54, 7
s_mov_b32 s44, s14
s_mov_b32 s45, s15
s_movk_i32 s61, 8192
L_ch_isM:
s_lshl_b32 s46, s55, 8
v_add_u32 v3, s46, v{C_VW}
global_load_dword v{C_CP}, v3, s[26:27]
s_lshl_b32 s46, s55, 7
v_add_u32 v3, s46, v14
v_mul_lo_u32 v3, v3, s61
v_add3_u32 v3, v3, v15, s54
""")
for i in range(16):
    e(f"global_load_dwordx4 {vr(C_A+4*i)}, v3, s[44:45] {NTS}")
    if i < 15:
        e("s_add_u32 s44, s44, s61")
        e("s_addc_u32 s45, s45, 0")
stamp(7)
e(f"""
s_waitcnt lgkmcnt(0)
s_barrier
s_and_b32 s58, s60, 63
""")
e(f"""
v_mov_b32 v{C_ONES}, -1
v_mov_b32 v{C_ONES+1}, -1
v_mov_b32 v{C_ONES+2}, -1
v_mov_b32 v{C_ONES+3}, -1
v_lshrrev_b32 v3, 5, v0
s_lshl_b32 s46, s51, 2
v_add_u32 v3, s46, v3
s_movk_i32 s46, 14336
v_mul_lo_u32 v{C_T}, v3, s46
v_and_b32 v3, 31, v0
v_lshl_add_u32 v{C_T}, v3, 4, v{C_T}
s_lshl_b32 s46, s52, 9
s_add_u32 s46, s46, 0x{O_IN:x}
v_add_u32 v{C_T}, s46, v{C_T}
v_add_u32 v{C_T+1}, 28672, v{C_T}
global_store_dwordx4 v{C_T}, {vr(C_ONES)}, s[34:35] sc1
global_store_dwordx4 v{C_T+1}, {vr(C_ONES)}, s[34:35] sc1
v_lshrrev_b32 v3, 3, v0
v_lshlrev_b32 v3, 3, v3
v_lshl_add_u32 v{C_AV}, v15, 2, v3
s_lshl_b32 s46, s57, 7
v_add_u32 v{C_QA}, s46, v14
v_lshlrev_b32 v{C_QA}, 13, v{C_QA}
s_lshl_b32 s46, s58, 7
v_add3_u32 v{C_QA}, v{C_QA}, v15, s46
s_lshl_b32 s46, s57, 8
v_add_u32 v{C_XA}, s46, v{C_VW}
v_lshlrev_b32 v14, 1, v14
v_add_u32 v{C_AD}, s56, v{C_AV}
""")
if OPT["dry"] and OPT["cdry"]:
    dry_enter()
    e("s_branch L_chain_compute")
    e.label("L_chain_dry_ret")
    dry_leave()
e("s_branch L_chain_compute")

T_WO = 16; T_G = 80; T_U = 112; T_DN = 144; T_SP = 176
T_CB = 177; T_SB = 178; T_GA = 179; T_GB = 180; T_X = 181; T_X1 = 182
T_PO = 183; T_PO2 = 184; T_PM = 185; T_A2 = 186; T_XF = 187; T_XO = 188; T_R2W = 189; T_R2R = 190; T_ST = 191; T_OUT = 192
T_XS = 193; T_RW = 194; T_RR = 195; T_NC = 196; T_RA = 197; T_RB = 198; T_POB = 4; T_POB2 = 5; T_PMB = 6; T_WA = 8; T_WB = 10; T_P = 12
T_O = 200; T_ML = 208; T_ACC = 216; T_T = 232
TD = OPT["tdepth"]
e.label("L_tail_stream")
e(f"global_load_dword v{T_NC}, v1, s[34:35] offset:{NONCE} sc1")
if OPT.get("gupf", 0):
    PFP = {1: "", 2: "nt", 3: "sc1"}[OPT["gupf"]]
    e("s_lshl_b32 s46, s53, 3")
    e("s_add_u32 s46, s46, s3")
    e("s_mul_i32 s46, s46, 7168")
    e("v_add_u32 v3, s46, v2")
    e("v_add_u32 v14, 0x1000, v3")
    for mat, (ptr, tile) in enumerate(((20, T_G), (22, T_U))):
        for i in range(7):
            e(f"global_load_dwordx4 {vr(tile+4*i)}, {'v3' if i < 4 else 'v14'}, s[{ptr}:{ptr+1}] offset:{(i%4)*1024} {PFP}")
def wo_base(head, sl, dst):
    e(f"""
s_lshr_b32 s46, {sl}, 1
s_lshl_b32 s46, s46, 5
s_and_b32 s54, {sl}, 1
s_lshl_b32 s54, s54, 2
s_add_u32 s46, s46, s54
s_lshl_b32 s54, {head}, 7
s_add_u32 s46, s46, s54
s_lshl_b32 s46, s46, 10
v_add_u32 {dst}, s46, v2
""")
def wo_loads(tile, hook=None):
    for n in range(16):
        drel = 8 * (n & 3) + 2 * (n >> 3) + ((n >> 2) & 1)
        off = drel * 1024
        e(f"s_add_u32 s44, s16, {off & ~0xfff}")
        e("s_addc_u32 s45, s17, 0")
        e(f"global_load_dwordx4 {vr(tile+4*n)}, v3, s[44:45] offset:{off & 0xfff} {NT}")
e(f"""
s_and_b32 s46, s53, 3
s_cmp_eq_u32 s46, 3
s_cselect_b32 s75, 4, 8
s_cmp_ge_u32 s53, 28
s_cselect_b32 s75, 8, s75
s_cselect_b32 s76, 7, 0
s_cmp_lt_u32 s3, s75
s_cselect_b32 s75, 1, 0
s_cmp_lt_u32 s3, s76
s_cselect_b32 s76, 1, 0
s_lshl_b32 s77, s3, 2
s_add_u32 s77, s77, 3
s_sub_u32 s78, s53, 24
s_cmp_eq_u32 s75, 0
s_cbranch_scc1 L_t_noA
""")
wo_base("s53", "s3", "v3")
wo_loads(T_WO)
e.label("L_t_noA")
e("s_cmp_eq_u32 s76, 0")
e("s_cbranch_scc1 L_t_noB")
wo_base("s77", "s78", "v3")
wo_loads(T_G)
e.label("L_t_noB")
e(f"""
s_cmp_lg_u32 s3, 0
s_cbranch_scc1 L_t_noclr
v_mov_b32 v{T_O}, -1
v_mov_b32 v{T_O+1}, -1
v_mov_b32 v{T_O+2}, -1
v_mov_b32 v{T_O+3}, -1
s_lshl_b32 s46, s53, 11
v_add_u32 v14, s46, v2
v_add_u32 v15, 0x{A_IN:x}, v14
global_store_dwordx4 v15, {vr(T_O)}, s[34:35] sc1
global_store_dwordx4 v15, {vr(T_O)}, s[34:35] offset:1024 sc1
v_add_u32 v15, 0x{F_IN:x}, v14
global_store_dwordx4 v15, {vr(T_O)}, s[34:35] sc1
global_store_dwordx4 v15, {vr(T_O)}, s[34:35] offset:1024 sc1
s_lshl_b32 s46, s53, 6
s_add_u32 s46, s46, 0x{X1_IN:x}
v_add_u32 v15, s46, v2
s_mov_b64 exec, 15
global_store_dwordx4 v15, {vr(T_O)}, s[34:35] sc1
s_getreg_b32 s46, hwreg(HW_REG_XCC_ID)
s_and_b32 s46, s46, 15
s_add_u32 s46, s46, 1
v_mov_b32 v15, s46
v_mov_b32 v14, s53
s_mov_b64 exec, 1
s_waitcnt vmcnt(0)
global_store_byte v14, v15, s[32:33] offset:128 sc1
s_mov_b64 exec, -1
L_t_noclr:
""")
e(f"""
v_lshrrev_b32 v14, 2, v0
v_and_b32 v15, 3, v0
v_lshlrev_b32 v{T_PO}, 9, v14
v_lshl_add_u32 v{T_PO}, v15, 4, v{T_PO}
s_mul_i32 s46, s53, 14336
s_lshl_b32 s54, s3, 6
s_add_u32 s46, s46, s54
s_add_u32 s46, s46, 0x{O_IN:x}
s_mul_i32 s54, s77, 14336
s_lshl_b32 s55, s78, 6
s_add_u32 s54, s54, s55
s_add_u32 s54, s54, 0x{O_IN:x}
v_add_u32 v{T_POB}, s54, v{T_PO}
v_add_u32 v{T_POB2}, 0x2000, v{T_POB}
v_add_u32 v{T_PO}, s46, v{T_PO}
v_add_u32 v{T_PO2}, 0x2000, v{T_PO}
s_lshl_b32 s46, s53, 9
s_add_u32 s46, s46, 0x{ML_IN:x}
v_lshlrev_b32 v{T_PM}, 4, v14
s_lshl_b32 s54, s77, 9
s_add_u32 s54, s54, 0x{ML_IN:x}
v_add_u32 v{T_PMB}, s54, v{T_PM}
v_add_u32 v{T_PM}, s46, v{T_PM}
s_lshl_b32 s46, s53, 11
v_add_u32 v{T_A2}, s46, v2
v_add_u32 v{T_XF}, 0x{X1_IN:x}, v2
v_lshlrev_b32 v14, 2, v0
s_lshl_b32 s46, s3, 8
v_add_u32 v14, s46, v14
v_add_u32 v{T_XO}, 0x{X1_IN:x}, v14
v_lshlrev_b32 v14, 1, v14
v_add_u32 v{T_RA}, 0x{RP_IN+4096:x}, v14
v_lshrrev_b32 v15, 5, v0
v_lshlrev_b32 v{T_R2W}, 8, v15
v_and_b32 v15, 7, v0
v_lshl_add_u32 v{T_R2W}, v15, 5, v{T_R2W}
v_bfe_u32 v15, v0, 3, 2
v_lshl_add_u32 v{T_R2W}, v15, 3, v{T_R2W}
s_lshl_b32 s46, s3, 9
v_add_u32 v{T_R2W}, s46, v{T_R2W}
v_lshrrev_b32 v15, 3, v0
v_lshlrev_b32 v{T_R2R}, 9, v15
v_and_b32 v15, 7, v0
v_lshl_add_u32 v{T_R2R}, v15, 2, v{T_R2R}
s_lshl_b32 s46, s3, 5
v_add_u32 v{T_R2R}, s46, v{T_R2R}
s_lshl_b32 s46, s3, 11
v_lshlrev_b32 v{T_RW}, 5, v0
v_add_u32 v{T_RW}, s46, v{T_RW}
s_lshl_b32 s46, s3, 10
v_add_u32 v{T_RR}, s46, v2
s_lshl_b32 s46, s3, 6
v_add_u32 v15, s46, v0
v_lshrrev_b32 v{T_ST}, 2, v15
v_lshlrev_b32 v{T_ST}, 11, v{T_ST}
v_and_b32 v15, 3, v15
v_lshl_add_u32 v{T_ST}, v15, 4, v{T_ST}
s_lshl_b32 s46, s53, 6
v_add_u32 v{T_ST}, s46, v{T_ST}
v_and_b32 v15, 3, v0
v_lshlrev_b32 v{T_OUT}, 3, v15
v_lshrrev_b32 v15, 5, v0
v_lshl_add_u32 v{T_OUT}, v15, 2, v{T_OUT}
s_lshl_b32 s46, s53, 5
v_add_u32 v{T_OUT}, s46, v{T_OUT}
global_load_dword v{T_X}, v{T_OUT}, s[8:9]
v_bfe_u32 v15, v0, 4, 1
v_lshlrev_b32 v15, 2, v15
v_lshl_add_u32 v15, v{T_OUT}, 1, v15
v_add_u32 v{T_XS}, 0x{X1_IN:x}, v15
v_lshlrev_b32 v15, 1, v15
v_add_u32 v{T_RB}, 0x{RP_IN:x}, v15
""")
if OPT["dry"]:
    l = e.newlab("Ld")
    e("s_cmp_lg_u32 s3, 1")
    e(f"s_cbranch_scc1 {l}")
    dry_enter()
    e("s_branch L_tail_compute")
    e.label("L_tail_dry_ret")
    dry_leave()
    e.label(l)
e("s_cmp_ge_u32 s53, 28")
e("s_cbranch_scc1 L_t_ld_aux")
if OPT["tbar"]: e("s_barrier")
e(f"""
v_lshrrev_b32 v14, 3, v0
v_lshlrev_b32 v14, 3, v14
s_lshl_b32 s46, s3, 6
v_add_u32 v14, s46, v14
s_movk_i32 s46, 3584
v_mul_lo_u32 v14, v14, s46
v_and_b32 v3, 7, v0
v_lshl_add_u32 v14, v3, 4, v14
s_lshl_b32 s46, s53, 7
v_add_u32 v14, s46, v14
v_bfe_u32 v3, v0, 2, 1
v_mul_u32_u24 v3, 14336, v3
v_add_u32 v15, 14336, v14
v_sub_u32 v15, v15, v3
v_add_u32 v14, v14, v3
""")
for mat, (ptr, tile) in enumerate(((20, T_G), (22, T_U))):
    for i in range(8):
        if i % 4 == 0 and TD: e(f"s_waitcnt vmcnt({TD})")
        e(f"s_add_u32 s44, s{ptr}, {(i%4)*3584}")
        e(f"s_addc_u32 s45, s{ptr+1}, 0")
        e(f"global_load_dwordx4 {vr(tile+4*i)}, {'v14' if i < 4 else 'v15'}, s[44:45] {NT if not OPT.get('gupf', 0) else OPT.get('gut', '').replace('-', '')}")
if OPT["tbar"]: e("s_barrier")
e.label("L_t_ld_aux")
PL = 200
def aux_loads():
    for rk in range(4):
        e(f"s_add_u32 s44, s34, {rk*16384}")
        e("s_addc_u32 s45, s35, 0")
        e(f"global_load_dwordx2 v[{PL+8*rk}:{PL+8*rk+1}], v{T_RA}, s[44:45] sc1")
        e(f"global_load_dwordx2 v[{PL+8*rk+4}:{PL+8*rk+5}], v{T_RB}, s[44:45] sc1")
        e(f"s_add_u32 s44, s44, 4096")
        e("s_addc_u32 s45, s45, 0")
        e(f"global_load_dwordx2 v[{PL+8*rk+2}:{PL+8*rk+3}], v{T_RA}, s[44:45] sc1")
        e(f"s_add_u32 s44, s44, 8192")
        e("s_addc_u32 s45, s45, 0")
        e(f"global_load_dwordx2 v[{PL+8*rk+6}:{PL+8*rk+7}], v{T_RB}, s[44:45] sc1")
    e(f"v_and_b32 v14, 31, v0")
    e(f"global_load_ubyte v{PL+32}, v14, s[32:33] offset:128 sc1")
if TD: e(f"s_waitcnt vmcnt({TD})")
aux_loads()
e("s_cmp_ge_u32 s53, 28")
e("s_cbranch_scc1 L_t_nodn")
e(f"""
s_lshl_b32 s46, s53, 6
s_lshl_b32 s54, s3, 3
s_add_u32 s46, s46, s54
s_lshl_b32 s46, s46, 10
v_add_u32 v3, s46, v2
""")
for i in range(8):
    off = i * 1024
    e(f"s_add_u32 s44, s24, {off & ~0xfff}")
    e("s_addc_u32 s45, s25, 0")
    e(f"global_load_dwordx4 {vr(T_DN+4*i)}, v3, s[44:45] offset:{off & 0xfff} {NT}")
e("s_waitcnt vmcnt(25)")
e("s_branch L_t_il1")
e.label("L_t_nodn")
e("s_waitcnt vmcnt(17)")
e.label("L_t_il1")
stamp(2, True)
e(f"v_add_u32 v{T_NC}, 0x{TAGC:x}, v{T_NC}")
il = Interleaver(T_SP)
wo_lo, wo_hi = il.run(T_WO, 8)
g_lo, g_hi = il.run(T_G, 4)
u_lo, u_hi = il.run(T_U, 4)
e(f"v_readfirstlane_b32 s59, v{T_NC}")
e(f"s_mov_b32 s63, {OPT['spin']}")
e("s_cmp_ge_u32 s53, 28")
e("s_cbranch_scc1 L_t_aux_w0")
e("s_waitcnt vmcnt(8)")
e("s_branch L_t_aux_chk")
lg = poll_begin()
e("s_sleep 8")
aux_loads()
e.label("L_t_aux_w0")
e("s_waitcnt vmcnt(0)")
e.label("L_t_aux_chk")
tag_minmax([PL + 2 * k + 1 for k in range(16)], T_T + 2, T_T + 3)
e(f"v_cmp_ne_u32 vcc, s59, v{T_T+2}")
e(f"v_cmp_ne_u32 s[44:45], s59, v{T_T+3}")
e("s_or_b64 vcc, vcc, s[44:45]")
e(f"v_cmp_eq_u32 s[44:45], 0, v{PL+32}")
e("s_or_b64 vcc, vcc, s[44:45]")
e(f"s_cbranch_vccnz {lg[0]}")
e.label(lg[1])
stamp(3, True)
if not OPT["force_global"]:
    e("s_getreg_b32 s46, hwreg(HW_REG_XCC_ID)")
    e("s_and_b32 s46, s46, 15")
    e("s_add_u32 s46, s46, 1")
    e(f"v_cmp_ne_u32 vcc, s46, v{PL+32}")
    e("s_cmp_eq_u64 vcc, 0")
    e("s_cselect_b32 s62, 1, 0")
for k, dst in ((0, T_SB), (2, T_CB), (4, T_GA), (6, T_GB)):
    e(f"v_add_f32 v{PL+k}, v{PL+k}, v{PL+8+k}")
    e(f"v_add_f32 v{PL+16+k}, v{PL+16+k}, v{PL+24+k}")
    e(f"v_add_f32 v{PL+k}, v{PL+k}, v{PL+16+k}")
    rnd_bf16(f"v{dst}", f"v{PL+k}")
e(f"v_add_f32 v{T_CB}, 1.0, v{T_CB}")
rnd_bf16(f"v{T_CB}", f"v{T_CB}")
e(f"v_bfe_u32 v15, v0, 4, 1")
e(f"v_lshlrev_b32 v15, 4, v15")
e(f"v_lshrrev_b32 v{T_X}, v15, v{T_X}")
e(f"v_lshlrev_b32 v{T_X}, 16, v{T_X}")

def ffn_pass(src, ldsoff, fillers=None):
    H2 = T_O
    e(f"v_mov_b32_dpp v{T_T}, v{src} quad_perm:[1,1,3,3] {DPPALL}")
    e(f"v_cvt_pk_bf16_f32 v{T_T}, v{src}, v{T_T}")
    e(f"v_mov_b32_dpp v{H2}, v{T_T} quad_perm:[0,0,0,0] {DPPALL}")
    e(f"v_mov_b32_dpp v{H2+1}, v{T_T} quad_perm:[2,2,2,2] {DPPALL}")
    e(f"v_mov_b32_dpp v{H2+2}, v{H2} row_half_mirror {DPPALL}")
    e(f"v_mov_b32_dpp v{H2+3}, v{H2+1} row_half_mirror {DPPALL}")
    for k in range(4):
        for mat, (lo, hi) in enumerate(((g_lo, g_hi), (u_lo, u_hi))):
            for r in range(4):
                for hf, tab in ((0, lo), (1, hi)):
                    a_ = T_ACC + 8 * mat + 2 * r + hf
                    c = "0" if k == 0 else f"v{a_}"
                    e(f"v_dot2_f32_bf16 v{a_}, v{tab[(k,r)]}, v{H2+k}, {c}")
                if fillers and hf == 1 and r % 2 == 1: e(fillers.pop(0))
    while fillers: e(fillers.pop(0))
    red_T32n([(T_ACC + i, T_ACC + 8 + i) for i in range(8)])
    red_T16n([(T_ACC + i, T_ACC + 4 + i) for i in range(4)])
    red_T8(T_T, T_ACC, T_ACC + 2)
    red_T8(T_T + 1, T_ACC + 1, T_ACC + 3)
    e(f"ds_write_b64 v{T_R2W}, v[{T_T}:{T_T+1}] offset:{ldsoff}")

def ffn_collect(dst, tmp, tmp2, ldsoff):
    e(f"ds_read_b32 v{dst}, v{T_R2R} offset:{ldsoff}")
    e(f"ds_read_b32 v{tmp}, v{T_R2R} offset:{ldsoff+256}")
    e("s_waitcnt lgkmcnt(0)")
    red_T32(dst, tmp)
    red_plain("v_add_f32", dst, tmp2, [4, 3])

e("s_cmp_ge_u32 s53, 28")
e("s_cbranch_scc1 L_t_nopre")
ffn_pass(T_CB, L_RED3)
ffn_pass(T_SB, L_RED4)
e("s_waitcnt lgkmcnt(0)")
e("s_barrier")
ffn_collect(T_P, T_T, T_T + 1, L_RED3)
ffn_collect(T_P + 1, T_T, T_T + 1, L_RED4)
e("s_waitcnt vmcnt(0)")
d_lo, d_hi = il.run(T_DN, 4)
e.flush()
e.label("L_t_nopre")
stamp(4, True)
stamp(1)
e("s_branch L_tail_compute")

e.raw(".p2align 6")
e.label("L_att_kphase")
e("v_and_b32 v14, 3, v0")
e("v_lshlrev_b32 v14, 8, v14")
e("v_lshrrev_b32 v15, 2, v0")
e("v_lshl_add_u32 v14, v15, 4, v14")
e(f"ds_read_b128 {vr(QB)}, v14 offset:{L_QB}")
e("s_waitcnt lgkmcnt(0)")
stamp(2)

def kmfma(u):
    D = DA if u % 2 == 0 else DB
    for j in range(4):
        e(f"v_mfma_f32_16x16x32_bf16 {vr(D+4*j)}, {vr(KB+16*u+4*j)}, {vr(QB)}, 0")

def kpost(u):
    D = DA if u % 2 == 0 else DB
    S = SR + u
    for b in range(4):
        for j in range(4):
            bb = (j + b) % 4
            mod = ror(4 * (j - bb), 1 << j)
            if b == 0: e(f"v_mov_b32_dpp v{S}, v{D+4*j+bb} {mod}")
            else: e(f"v_add_f32_dpp v{S}, v{D+4*j+bb}, v{S} {mod}")
    rnd_bf16(f"v{S}", f"v{S}")
    e(f"v_mul_f32 v{S}, 0x{SCALE:x}, v{S}")
    rnd_bf16(f"v{S}", f"v{S}")
    if u >= 3: e(f"v_add_f32 v{S}, s{69+u}, v{S}")

kmfma(0)
for u in range(NU):
    if u + 1 < NU: kmfma(u + 1)
    kpost(u)
e(f"v_max3_f32 v14, v{SR}, v{SR+1}, v{SR+2}")
e(f"v_max3_f32 v14, v14, v{SR+3}, v{SR+4}")
e(f"v_max_f32 v14, v14, v{SR+5}")
red_plain("v_max_f32", 14, 15, [3, 2, 4, 5])
e(f"s_mov_b32 s46, 0x{LOG2E:x}")
e(f"v_mul_f32 v{DB}, s46, v14")
PB = KB; TP = KB + 32
for u in range(NU): e(f"v_fma_f32 v{SR+u}, v{SR+u}, s46, -v{DB}")
for u in range(NU): e(f"v_exp_f32 v{SR+u}, v{SR+u}")
for u in range(NU):
    S = SR + u; B0 = PB + 4 * u; T = TP + 3 * u
    e(f"v_cvt_pk_bf16_f32 v{T}, v{S}, v{S}")
    e(f"v_and_b32 v{B0}, 0xffff, v{T}")
    e(f"v_and_b32 v{T+1}, 0xffff, v{T}")
    e(f"v_and_b32 v{T}, 0xffff0000, v{T}")
for u in range(NU):
    B0 = PB + 4 * u; T = TP + 3 * u
    e(f"v_mov_b32_dpp v{B0}, v{T} {ror(4, 0xa)}")
    e(f"v_mov_b32_dpp v{T+1}, v{T} {ror(4, 0x5)}")
for u in range(NU):
    B0 = PB + 4 * u; T = TP + 3 * u
    e(f"v_mov_b32_dpp v{B0+1}, v{T+1} {ror(12)}")
    e(f"v_mov_b32_dpp v{B0+2}, v{B0} {ror(8)}")
    e(f"v_mov_b32_dpp v{B0+3}, v{T+1} {ror(4)}")
e(f"v_add_f32 v{SR}, v{SR}, v{SR+1}")
e(f"v_add_f32 v{SR+2}, v{SR+2}, v{SR+3}")
e(f"v_add_f32 v{SR+4}, v{SR+4}, v{SR+5}")
e(f"v_add_f32 v{SR}, v{SR}, v{SR+2}")
e(f"v_add_f32 v15, v{SR}, v{SR+4}")
red_plain("v_add_f32", 15, SR + 1, [3, 2, 4, 5])
e(f"""
v_and_b32 v{SR}, 3, v0
v_lshlrev_b32 v{SR}, 6, v{SR}
s_lshl_b32 s46, s3, 3
v_add_u32 v{SR}, s46, v{SR}
""")
setexec(0xf, 0)
e(f"ds_write_b64 v{SR}, v[14:15] offset:{L_WML-8}")
fullexec()
e(f"""
v_and_b32 v{VOA}, 3, v0
v_lshlrev_b32 v{VOA}, 9, v{VOA}
v_lshrrev_b32 v15, 4, v0
v_lshl_add_u32 v{VOA}, v15, 7, v{VOA}
v_bfe_u32 v15, v0, 2, 1
v_lshl_add_u32 v{VOA}, v15, 4, v{VOA}
s_lshl_b32 s46, s3, 11
v_add_u32 v{VOA}, s46, v{VOA}
""")
stamp(3)
e.flush()
e("s_setpc_b64 s[98:99]")

e.label("L_att_vphase")
for u in range(NU):
    with Guard():
        e(f"s_waitcnt vmcnt({4*(NU-1-u)})")
    V0 = VB + 16 * u
    for m in range(4):
        for r in range(m + 1, 4):
            e(f"v_swap_b32 v{V0+4*m+r}, v{V0+4*r+m}")
    for r in range(4):
        c = "0" if u == 0 else vr(ACC + 4 * r)
        e(f"v_mfma_f32_16x16x32_bf16 {vr(ACC+4*r)}, {vr(V0+4*r)}, {vr(PB+4*u)}, {c}")
stamp(4)
setexec(0x00ff00ff, 0x00ff00ff)
for r in range(4):
    e(f"ds_write_b128 v{VOA}, {vr(ACC+4*r)} offset:{L_RED-2048+32*r}")
fullexec()
with Guard():
    e("s_waitcnt lgkmcnt(0)")
    e("s_barrier")
    e("s_branch L_done")
if OPT["dry"]:
    e("s_branch L_att_dry_ret")

def c_distribute(src):
    e(f"ds_write_b32 v{C_VW}, v{src} offset:{L_VEC}")
    e("s_waitcnt lgkmcnt(0)")
    e(f"ds_read_b128 {vr(C_VP)}, v14 offset:{L_VEC}")
    e(f"ds_read_b128 {vr(C_VP+4)}, v14 offset:{L_VEC+16}")

def c_gemv(lo, hi, dst):
    dots(lo, hi, 8, C_ACC, lambda k: f"v{C_VP+k}")
    red_T32n([(C_ACC + i, C_ACC + 4 + i) for i in range(4)])
    red_T16n([(C_ACC + i, C_ACC + 2 + i) for i in range(2)])
    red_T8(dst, C_ACC, C_ACC + 1)

e.raw(".p2align 6")
e.label("L_chain_compute")
with Guard():
    e("s_waitcnt vmcnt(2)")
stamp(1)
T0 = C_T
e(f"s_mov_b32 s46, 0x{LOG2E ^ 0x80000000:x}")
e(f"v_lshlrev_b32 v{T0}, 16, v{C_CP}")
e(f"v_and_b32 v{T0+1}, 0xffff0000, v{C_CP}")
for k in range(2): e(f"v_mul_f32 v{T0+2+k}, s46, v{T0+k}")
for k in range(2): e(f"v_exp_f32 v{T0+2+k}, v{T0+2+k}")
for k in range(2): e(f"v_add_f32 v{T0+2+k}, 1.0, v{T0+2+k}")
for k in range(2): e(f"v_rcp_f32 v{T0+4+k}, v{T0+2+k}")
for k in range(2): e(f"v_mul_f32 v{T0+6+k}, v{T0+k}, v{T0+4+k}")
for k in range(2): e(f"v_fma_f32 v{T0+k}, -v{T0+6+k}, v{T0+2+k}, v{T0+k}")
for k in range(2): e(f"v_fma_f32 v{T0+6+k}, v{T0+k}, v{T0+4+k}, v{T0+6+k}")
e(f"v_cvt_pk_bf16_f32 v{T0}, v{T0+6}, v{T0+7}")
c_distribute(T0)
cil = Interleaver(C_SP)
a_lo, a_hi = cil.run(C_A, 8)
e(f"v_add_u32 v{C_T+1}, 0x{TAGC:x}, v{C_FL}")
e("s_waitcnt lgkmcnt(0)")
e(f"v_readfirstlane_b32 s59, v{C_T+1}")
e("s_mov_b32 s61, 0")
e("s_cmp_ge_u32 s60, 192")
e("s_cbranch_scc1 L_ch_noA2")
e.flush()
e.label("L_ch_gemvA")
c_gemv(a_lo, a_hi, C_T)
e(f"v_mov_b32 v{C_T+1}, s59")
with Guard():
    e(f"global_store_dwordx2 v{C_AD}, v[{C_T}:{C_T+1}], s[34:35] sc1")
e.flush()
e("s_cmp_lg_u32 s61, 0")
e("s_cbranch_scc1 L_ch_gemvA_ret")
e.label("L_ch_noA2")
stamp(2)
e(f"s_lshl_b32 s46, s57, 10")
e(f"s_add_u32 s46, s46, 0x{MP_IN:x}")
e(f"v_add_u32 v3, s46, v2")
def mp_loads():
    for k in range(8):
        e(f"s_add_u32 s44, s34, {k*4096}")
        e("s_addc_u32 s45, s35, 0")
        e(f"global_load_dwordx4 {vr(MPL+4*k)}, v3, s[44:45] sc1")
with Guard():
    e(f"global_load_dwordx4 {vr(C_X)}, v2, s[8:9]")
    e(f"global_load_dword v{C_XP}, v{C_XA}, s[8:9]")
    e("s_mov_b32 s44, s14")
    e("s_mov_b32 s45, s15")
    for i in range(16):
        e(f"global_load_dwordx4 {vr(C_WQ+4*i)}, v{C_QA}, s[44:45] {NTS}")
        if i < 15:
            e("s_add_u32 s44, s44, 8192")
            e("s_addc_u32 s45, s45, 0")
    mp_loads()
    e("s_waitcnt vmcnt(24)")
ln_stats(C_X, C_T)
N0 = C_X
e(f"v_lshlrev_b32 v{N0}, 16, v{C_XP}")
e(f"v_and_b32 v{N0+1}, 0xffff0000, v{C_XP}")
for k in range(2): e(f"v_subrev_f32 v{N0+k}, s64, v{N0+k}")
rnd_pair(N0, N0 + 1)
for k in range(2): e(f"v_mul_f32 v{N0+2+k}, s65, v{N0+k}")
for k in range(2): e(f"v_fma_f32 v{N0+k}, -v{N0+2+k}, s66, v{N0+k}")
for k in range(2): e(f"v_fma_f32 v{N0+k}, v{N0+k}, s65, v{N0+2+k}")
rnd_pair(N0, N0 + 1)
with Guard():
    e("s_waitcnt vmcnt(8)")
q_lo, q_hi = cil.run(C_WQ, 8)
with Guard():
    e(f"s_mov_b32 s63, {OPT['spin']}")
    e("s_branch L_ch_mpchk")
    lg = poll_begin()
    mp_loads()
    e.label("L_ch_mpchk")
    e("s_waitcnt vmcnt(0)")
    poll_end_tags(lg, [MPL + 2 * k + 1 for k in range(16)], C_T, C_T + 1)
stamp(3)
for c_ in range(2):
    for h_ in range(2):
        r0 = MPL + 4 * c_ + 2 * h_
        e(f"v_add_f32 v{r0}, v{r0}, v{r0+8}")
        e(f"v_add_f32 v{r0+16}, v{r0+16}, v{r0+24}")
        e(f"v_add_f32 v{C_MP+2*c_+h_}, v{r0}, v{r0+16}")
rnd_pair(C_MP, C_MP + 1)
rnd_pair(C_MP + 2, C_MP + 3)
for k in range(2): e(f"v_add_f32 v{C_MP+2+k}, 1.0, v{C_MP+2+k}")
rnd_pair(C_MP + 2, C_MP + 3)
for k in range(2): e(f"v_mul_f32 v{N0+k}, v{N0+k}, v{C_MP+2+k}")
rnd_pair(N0, N0 + 1)
for k in range(2): e(f"v_add_f32 v{N0+k}, v{N0+k}, v{C_MP+k}")
e(f"v_cvt_pk_bf16_f32 v{N0}, v{N0}, v{N0+1}")
c_distribute(N0)
e(f"s_lshl_b32 s46, s57, 15")
e(f"s_lshl_b32 s54, s58, 9")
e(f"s_add_u32 s46, s46, s54")
e(f"s_add_u32 s46, s46, 0x{QP_IN:x}")
e(f"v_add_u32 v3, s46, v{C_AV}")
e("s_waitcnt lgkmcnt(0)")
c_gemv(q_lo, q_hi, C_T)
e(f"v_mov_b32 v{C_T+1}, s59")
with Guard():
    e(f"global_store_dwordx2 v3, v[{C_T}:{C_T+1}], s[34:35] sc1")
stamp(4)
e.flush()
e("s_cmp_lt_u32 s60, 192")
e("s_cbranch_scc1 L_ch_gemvA_ret")
e("s_mov_b32 s61, 1")
e("s_branch L_ch_gemvA")
e.label("L_ch_gemvA_ret")
QQ = 16
e(f"""
s_lshl_b32 s46, s51, 12
s_add_u32 s46, s46, 0x{QP_IN:x}
v_add_u32 v3, s46, v2
""")
with Guard():
    lg = poll_begin()
    for kq in range(4):
        e(f"s_add_u32 s44, s34, {kq*32768}")
        e("s_addc_u32 s45, s35, 0")
        for j in range(4):
            e(f"global_load_dwordx4 {vr(QQ+16*kq+4*j)}, v3, s[44:45] offset:{1024*j} sc1")
    e("s_waitcnt vmcnt(0)")
    poll_end_tags(lg, [QQ + 2 * k + 1 for k in range(32)], C_T, C_T + 1)
for k in range(8):
    e(f"v_add_f32 v{QQ+2*k}, v{QQ+2*k}, v{QQ+16+2*k}")
    e(f"v_add_f32 v{QQ+32+2*k}, v{QQ+32+2*k}, v{QQ+48+2*k}")
for k in range(8):
    e(f"v_add_f32 v{QQ+2*k}, v{QQ+2*k}, v{QQ+32+2*k}")
for j in range(4):
    e(f"v_cvt_pk_bf16_f32 v{QQ+4*j}, v{QQ+4*j}, v{QQ+4*j+2}")
for j in range(4):
    e(f"ds_write_b32 v{C_VW}, v{QQ+4*j} offset:{L_QB+256*j}")
e("v_mov_b32 v3, 1")
e("s_waitcnt lgkmcnt(0)")
e(f"ds_write_b32 v1, v3 offset:{L_FLAG}")
stamp(6)
e("s_setprio 0")
e(f"""
v_lshrrev_b32 v14, 5, v0
s_lshl_b32 s46, s51, 2
v_add_u32 v15, s46, v14
s_movk_i32 s46, 14336
v_mul_lo_u32 v{F_A}, v15, s46
v_and_b32 v3, 31, v0
v_lshl_add_u32 v{F_A}, v3, 4, v{F_A}
s_lshl_b32 s46, s52, 9
s_add_u32 s46, s46, 0x{O_IN:x}
v_add_u32 v{F_A}, s46, v{F_A}
v_add_u32 v{F_A+1}, 28672, v{F_A}
v_lshlrev_b32 v{F_A+2}, 9, v15
s_lshl_b32 s46, s52, 4
s_add_u32 s46, s46, 0x{ML_IN:x}
v_add_u32 v{F_A+2}, s46, v{F_A+2}
v_lshlrev_b32 v14, 6, v14
""")
lg = poll_begin()
e("s_sleep 1")
for rd in range(2):
    for j in range(4):
        e(f"ds_read_b128 {vr(WM+16*rd+4*j)}, v14 offset:{L_WML+128*rd+16*j}")
e("s_waitcnt lgkmcnt(0)")
e(f"v_min3_f32 v3, v{WM+1}, v{WM+3}, v{WM+5}")
for rd in range(2):
    for w in range(3 if rd == 0 else 0, 7, 2):
        if w + 1 < 7: e(f"v_min3_f32 v3, v3, v{WM+16*rd+2*w+1}, v{WM+16*rd+2*w+3}")
        else: e(f"v_min_f32 v3, v3, v{WM+16*rd+2*w+1}")
e("v_cmp_ngt_f32 vcc, v3, 0")
e(f"s_cbranch_vccnz {lg[0]}")
e.label(lg[1])
e(f"s_mov_b32 s46, 0x{LOG2E:x}")
for rd in range(2):
    W_ = WM + 16 * rd; MM = F_A + 4 + 4 * rd
    e(f"v_max3_f32 v{MM}, v{W_}, v{W_+2}, v{W_+4}")
    e(f"v_max3_f32 v{MM}, v{MM}, v{W_+6}, v{W_+8}")
    e(f"v_max3_f32 v{MM}, v{MM}, v{W_+10}, v{W_+12}")
    for w in range(7): e(f"v_sub_f32 v{F_F+7*rd+w}, v{W_+2*w}, v{MM}")
    for w in range(7): e(f"v_mul_f32 v{F_F+7*rd+w}, s46, v{F_F+7*rd+w}")
    for w in range(7): e(f"v_exp_f32 v{F_F+7*rd+w}, v{F_F+7*rd+w}")
    e(f"v_mul_f32 v{MM+1}, v{F_F+7*rd}, v{W_+1}")
    for w in range(1, 7): e(f"v_fmac_f32 v{MM+1}, v{F_F+7*rd+w}, v{W_+2*w+1}")
    e(f"v_mov_b32 v{MM+2}, s59")
    e(f"v_mov_b32 v{MM+3}, 0")
with Guard():
    e("s_mov_b32 exec_lo, 1")
    e("s_mov_b32 exec_hi, 1")
    e(f"global_store_dwordx4 v{F_A+2}, {vr(F_A+4)}, s[34:35] sc1")
    e(f"global_store_dwordx4 v{F_A+2}, {vr(F_A+8)}, s[34:35] offset:1024 sc1")
    e("s_mov_b64 exec, -1")
    e("s_setprio 3")
    e("s_barrier")
for rd in range(2):
    for w in range(7):
        e(f"ds_read_b128 {vr(F_R+28*rd+4*w)}, v2 offset:{L_RED+2048*w+1024*rd}")
for rd in range(2):
    e(f"s_waitcnt lgkmcnt({7*(1-rd)})")
    R0 = F_R + 28 * rd
    for k in range(4): e(f"v_mul_f32 v{R0+k}, v{R0+k}, v{F_F+7*rd}")
    for k in range(4): e(f"v_mul_f32 v{R0+4+k}, v{R0+4+k}, v{F_F+7*rd+1}")
    for w in range(2, 7):
        for k in range(4):
            e(f"v_fmac_f32 v{R0+4*(w%2)+k}, v{R0+4*w+k}, v{F_F+7*rd+w}")
    for k in range(4): e(f"v_add_f32 v{R0+k}, v{R0+k}, v{R0+4+k}")
    with Guard():
        e(f"global_store_dwordx4 v{F_A+rd}, {vr(R0)}, s[34:35] sc1")
with Guard():
    stamp(5)
    e("s_branch L_done")
if OPT["dry"] and OPT["cdry"]:
    e("s_setprio 3")
    e("s_branch L_chain_dry_ret")

e.raw(".p2align 6")
e.label("L_tail_compute")
M_ = T_T; TT = T_T + 3
def ml_phase(pm, W):
    e(f"v_mov_b32 v{T_ML+4}, 0xff800000")
    e(f"v_mov_b32 v{T_ML+5}, 0")
    e(f"v_mov_b32 v{T_ML+6}, s59")
    with Guard():
        lg = poll_begin()
        e("s_sleep 2")
        e(f"global_load_dwordx4 {vr(T_ML)}, v{pm}, s[34:35] sc1")
        e("s_mov_b32 exec_hi, 0xffff")
        e(f"global_load_dwordx4 {vr(T_ML+4)}, v{pm}, s[34:35] offset:256 sc1")
        e("s_mov_b64 exec, -1")
        e("s_waitcnt vmcnt(0)")
        e(f"v_cmp_ne_u32 vcc, s59, v{T_ML+2}")
        e(f"v_cmp_ne_u32 s[44:45], s59, v{T_ML+6}")
        e("s_or_b64 vcc, vcc, s[44:45]")
        e(f"s_cbranch_vccnz {lg[0]}")
        e.label(lg[1])
    e(f"v_max_f32 v{M_}, v{T_ML}, v{T_ML+4}")
    red_plain("v_max_f32", M_, TT, [3, 2, 4, 5])
    e(f"s_mov_b32 s46, 0x{LOG2E:x}")
    e(f"v_sub_f32 v{W}, v{T_ML}, v{M_}")
    e(f"v_sub_f32 v{W+1}, v{T_ML+4}, v{M_}")
    e(f"v_mul_f32 v{W}, s46, v{W}")
    e(f"v_mul_f32 v{W+1}, s46, v{W+1}")
    e(f"v_exp_f32 v{W}, v{W}")
    e(f"v_exp_f32 v{W+1}, v{W+1}")
    e(f"v_mul_f32 v{M_}, v{W}, v{T_ML+1}")
    e(f"v_fmac_f32 v{M_}, v{W+1}, v{T_ML+5}")
    red_plain("v_add_f32", M_, TT, [3, 2, 4, 5])
    e(f"v_rcp_f32 v{TT}, v{M_}")
    e(f"v_fma_f32 v{M_}, -v{M_}, v{TT}, 1.0")
    e(f"v_fma_f32 v{TT}, v{M_}, v{TT}, v{TT}")
    e(f"v_mul_f32 v{W}, v{W}, v{TT}")
    e(f"v_mul_f32 v{W+1}, v{W+1}, v{TT}")

def o_poll(sets):
    for (po, po2, O) in sets:
        for k in range(4): e(f"v_mov_b32 v{O+4+k}, 0")
    with Guard():
        lg = poll_begin()
        for (po, po2, O) in sets:
            e(f"global_load_dwordx4 {vr(O)}, v{po}, s[34:35] sc1")
        e("s_mov_b32 exec_hi, 0xffff")
        for (po, po2, O) in sets:
            e(f"global_load_dwordx4 {vr(O+4)}, v{po2}, s[34:35] sc1")
        e("s_mov_b64 exec, -1")
        e("s_waitcnt vmcnt(0)")
        poll_end(lg, [O + k for (po, po2, O) in sets for k in range(8)], T_T)

def o_comp(W, O, lo_hi, first):
    for k in range(4): e(f"v_mul_f32 v{O+k}, v{W}, v{O+k}")
    for k in range(4): e(f"v_fmac_f32 v{O+k}, v{W+1}, v{O+4+k}")
    red_T32n([(O, O + 2), (O + 1, O + 3)])
    red_T16(O, O + 1)
    red_plain("v_add_f32", O, TT, [3, 2])
    e(f"v_mov_b32 v{TT}, v{O}")
    e(f"v_permlane16_swap_b32 v{O}, v{TT}")
    e(f"v_cvt_pk_bf16_f32 v{O}, v{O}, v{TT}")
    for k in range(8):
        e(f"v_readlane_b32 s{64+k}, v{O}, {(k>>1) + 32*(k&1)}")
    for k in range(8):
        for r in range(4):
            for hf in range(2):
                a_ = T_ACC + 2 * r + hf
                c = "0" if (k == 0 and first) else f"v{a_}"
                e(f"v_dot2_f32_bf16 v{a_}, v{lo_hi(k, r, hf)}, s{64+k}, {c}")

for k in range(8): e(f"v_mov_b32 v{T_ACC+k}, 0")
with Guard():
    e("s_cmp_eq_u32 s75, 0")
    e("s_cbranch_scc1 L_t_s1done")
ml_phase(T_PM, T_WA)
with Guard():
    e("s_cmp_eq_u32 s76, 0")
    e("s_cbranch_scc1 L_t_s1a")
ml_phase(T_PMB, T_WB)
o_poll([(T_PO, T_PO2, T_O), (T_POB, T_POB2, T_ML)])
o_comp(T_WB, T_ML, lambda k, r, hf: ((g_lo, g_hi) if k < 4 else (u_lo, u_hi))[hf][(k % 4, r)], False)
e.flush()
with Guard():
    e("s_branch L_t_s1b")
e.label("L_t_s1a")
o_poll([(T_PO, T_PO2, T_O)])
e.flush()
e.label("L_t_s1b")
stamp(2, False)
o_comp(T_WA, T_O, lambda k, r, hf: (wo_lo, wo_hi)[hf][(k, r)], False)
e.flush()
e.label("L_t_s1done")

def cu_reduce_store(inbox, tagl):
    e(f"ds_write_b128 v{T_RW}, {vr(T_ACC)} offset:{L_RED}")
    e(f"ds_write_b128 v{T_RW}, {vr(T_ACC+4)} offset:{L_RED+16}")
    with Guard():
        e("s_waitcnt lgkmcnt(0)")
        e("s_barrier")
        e("s_cmp_gt_u32 s3, 1")
        e(f"s_cbranch_scc1 {tagl}")
    regs = [200, 204, 208, 212, 216, 220, 224, 228]
    for w in range(8):
        e(f"ds_read_b128 {vr(regs[w])}, v{T_RR} offset:{L_RED+2048*w}")
    e(f"v_add_u32 v{TT}, 0x{inbox:x}, v{T_ST}")
    e("s_waitcnt lgkmcnt(0)")
    for a, b in ((0, 1), (2, 3), (4, 5), (6, 7), (0, 2), (4, 6), (0, 4)):
        for k in range(4):
            e(f"v_add_f32 v{regs[a]+k}, v{regs[a]+k}, v{regs[b]+k}")
    with Guard():
        store_mode(f"global_store_dwordx4 v{TT}, {vr(regs[0])}, s[34:35]")

def gather16(inbox, dst, nprod):
    e(f"v_add_u32 v{TT}, 0x{inbox:x}, v{T_A2}")
    if nprod < 32:
        for k in range(4): e(f"v_mov_b32 v{T_O+4+k}, 0")
    with Guard():
        lg = poll_begin()
        e(f"global_load_dwordx4 {vr(T_O)}, v{TT}, s[34:35] sc1")
        if nprod < 32: e("s_mov_b32 exec_hi, 0xffff")
        e(f"global_load_dwordx4 {vr(T_O+4)}, v{TT}, s[34:35] offset:1024 sc1")
        if nprod < 32: e("s_mov_b64 exec, -1")
        e("s_waitcnt vmcnt(0)")
        poll_end(lg, [T_O + k for k in range(8)], T_T)
    for k in range(4): e(f"v_add_f32 v{T_O+k}, v{T_O+k}, v{T_O+4+k}")
    red_T32n([(T_O, T_O + 2), (T_O + 1, T_O + 3)])
    red_T16(T_O, T_O + 1)
    red_plain("v_add_f32", T_O, TT, [3, 2])
    rnd_bf16(f"v{dst}", f"v{T_O}")

cu_reduce_store(A_IN, "L_t_s3")
stamp(3, False)
with Guard():
    e("s_cmp_lg_u32 s3, 0")
    e("s_cbranch_scc1 L_t_s3")
gather16(A_IN, T_O, 32)
e(f"v_mul_f32 v{T_O}, v{T_O}, v{T_GA}")
rnd_bf16(f"v{T_O}", f"v{T_O}")
e(f"v_add_f32 v{T_O}, v{T_O}, v{T_X}")
rnd_bf16(f"v{T_X1}", f"v{T_O}")
with Guard():
    setexec(0x000f000f, 0x000f000f)
    store_mode(f"global_store_dword v{T_XS}, v{T_X1}, s[34:35]")
    e("s_cmp_lg_u32 s53, 0")
    e("s_cbranch_scc1 L_t_nonN")
    e(f"v_mov_b32 v{TT}, s59")
    e("s_mov_b64 exec, 1")
    e(f"global_store_dword v1, v{TT}, s[34:35] offset:{NONCE} sc1")
    e.label("L_t_nonN")
    fullexec()
stamp(4, False)
e.flush()
e.label("L_t_s3")
with Guard():
    e("s_cmp_ge_u32 s53, 28")
    e("s_cbranch_scc1 L_t_s4")
XF = T_T + 8; XO = T_ML
L_ST = 16
with Guard():
    lg = poll_begin()
    e(f"global_load_dword v{XO}, v{T_XO}, s[34:35] sc1")
    e("s_waitcnt vmcnt(0)")
    e(f"v_cmp_eq_u32 vcc, -1, v{XO}")
    e(f"s_cbranch_vccnz {lg[0]}")
    e.label(lg[1])
stamp(5, False)
e(f"v_mul_f32 v{XF}, v{XO}, v{XO}")
e(f"v_mov_b32 v{XF+1}, v{XO}")
e(f"v_mul_f32 v{XO}, v{XO}, v{T_CB}")
fl = [f"v_permlane32_swap_b32 v{XF+1}, v{XF}", f"v_add_f32 v{XF+1}, v{XF+1}, v{XF}", f"v_mov_b32 v{XF+2}, v{XF+1}",
      f"v_permlane16_swap_b32 v{XF+1}, v{XF+2}", f"v_add_f32 v{XF+1}, v{XF+1}, v{XF+2}",
      f"v_add_f32_dpp v{XF+1}, v{XF+1}, v{XF+1} {ror(8)}", f"v_add_f32_dpp v{XF+1}, v{XF+1}, v{XF+1} {ror(4)}",
      f"v_add_f32_dpp v{XF+1}, v{XF+1}, v{XF+1} quad_perm:[2,3,0,1] {DPPALL}",
      f"v_add_f32_dpp v{XF+1}, v{XF+1}, v{XF+1} quad_perm:[1,0,3,2] {DPPALL}",
      f"v_lshrrev_b32 v{XF+2}, 5, v0", f"v_lshlrev_b32 v{XF+2}, 5, v{XF+2}", "s_lshl_b32 s46, s3, 2", f"v_add_u32 v{XF+2}, s46, v{XF+2}"]
ffn_pass(XO, L_RED2, fl)
setexec(1, 1)
e(f"ds_write_b32 v{XF+2}, v{XF+1} offset:{L_WML}")
fullexec()
with Guard():
    e("s_waitcnt lgkmcnt(0)")
    e("s_barrier")
for j in range(4):
    e(f"ds_read_b128 {vr(XF+4*j)}, v1 offset:{L_WML+16*j}")
G_ = T_T; U_ = T_T + 1
e(f"ds_read_b32 v{G_}, v{T_R2R} offset:{L_RED2}")
e(f"ds_read_b32 v{U_}, v{T_R2R} offset:{L_RED2+256}")
e("s_waitcnt lgkmcnt(2)")
S_ = XF; Q_ = XF + 8; T_ = XF + 1; V_ = XF + 2
for base in (S_, Q_):
    e(f"v_add_f32 v{base}, v{base}, v{base+1}")
    e(f"v_add_f32 v{base+2}, v{base+2}, v{base+3}")
    e(f"v_add_f32 v{base+4}, v{base+4}, v{base+5}")
    e(f"v_add_f32 v{base+6}, v{base+6}, v{base+7}")
e("s_waitcnt lgkmcnt(0)")
e(f"v_permlane32_swap_b32 v{G_}, v{U_}")
for base in (S_, Q_):
    e(f"v_add_f32 v{base}, v{base}, v{base+2}")
    e(f"v_add_f32 v{base+4}, v{base+4}, v{base+6}")
e(f"v_add_f32 v{G_}, v{G_}, v{U_}")
e(f"v_mov_b32 v{TT}, v{G_}")
for base in (S_, Q_):
    e(f"v_add_f32 v{base}, v{base}, v{base+4}")
e(f"v_permlane16_swap_b32 v{G_}, v{TT}")
e(f"v_add_f32 v{G_}, v{G_}, v{TT}")
e(f"v_mul_f32 v{S_}, 0x3b000000, v{S_}")
e(f"v_mul_f32 v{Q_}, 0x3b000000, v{Q_}")
e(f"v_fma_f32 v{Q_}, -v{S_}, v{S_}, v{Q_}")
e(f"v_add_f32_dpp v{G_}, v{G_}, v{G_} {ror(8)}")
e(f"v_max_f32 v{Q_}, 0, v{Q_}")
e(f"v_cvt_pk_bf16_f32 v{S_}, v{S_}, v{Q_}")
e(f"v_and_b32 v{Q_}, 0xffff0000, v{S_}")
e(f"v_lshlrev_b32 v{S_}, 16, v{S_}")
e(f"v_add_f32 v{Q_}, 0x3727c5ac, v{Q_}")
e(f"v_fma_f32 v{G_}, -v{S_}, v{T_P}, v{G_}")
rnd_bf16(f"v{Q_}", f"v{Q_}")
e(f"v_sqrt_f32 v{Q_}, v{Q_}")
rnd_bf16(f"v{Q_}", f"v{Q_}")
e(f"v_rcp_f32 v{T_}, v{Q_}")
e(f"v_fma_f32 v{G_}, v{G_}, v{T_}, v{T_P+1}")
rnd_bf16(f"v{G_}", f"v{G_}")
e(f"v_mov_b32 v{U_}, v{G_}")
e(f"v_permlane32_swap_b32 v{G_}, v{U_}")
e(f"v_mul_f32 v{TT}, v{G_}, v{G_}")
e(f"v_mov_b32 v{TT+1}, 0x3d372713")
e(f"v_fma_f32 v{TT}, v{TT}, v{TT+1}, 1.0")
e(f"v_mul_f32 v{TT}, v{TT}, v{G_}")
e(f"v_mul_f32 v{TT}, 0xc0135761, v{TT}")
e(f"v_exp_f32 v{TT}, v{TT}")
e(f"v_add_f32 v{TT}, 1.0, v{TT}")
e(f"v_rcp_f32 v{TT}, v{TT}")
e(f"v_mul_f32 v{G_}, v{G_}, v{TT}")
rnd_bf16(f"v{G_}", f"v{G_}")
e(f"v_mul_f32 v{G_}, v{G_}, v{U_}")
e(f"v_mov_b32_dpp v{U_}, v{G_} quad_perm:[1,1,3,3] {DPPALL}")
e(f"v_cvt_pk_bf16_f32 v{G_}, v{G_}, v{U_}")
for k in range(4): e(f"v_readlane_b32 s{64+k}, v{G_}, {2*k}")
dots(d_lo, d_hi, 4, T_ACC, lambda k: f"s{64+k}")
cu_reduce_store(F_IN, "L_done")
stamp(6)
e.flush()
e.label("L_t_s4")
with Guard():
    e("s_cmp_lg_u32 s3, 0")
    e("s_cbranch_scc1 L_done")
gather16(F_IN, T_O, 28)
e(f"v_mul_f32 v{T_O}, v{T_O}, v{T_GB}")
rnd_bf16(f"v{T_O}", f"v{T_O}")
e(f"v_add_f32 v{T_O}, v{T_O}, v{T_X1}")
e(f"v_mov_b32 v{TT}, v{T_O}")
e(f"v_permlane16_swap_b32 v{T_O}, v{TT}")
e(f"v_cvt_pk_bf16_f32 v{T_O}, v{T_O}, v{TT}")
with Guard():
    setexec(0xf, 0xf)
    e(f"global_store_dword v{T_OUT}, v{T_O}, s[30:31]")
    stamp(7)
    e("s_branch L_done")
if OPT["dry"]:
    e("s_branch L_tail_dry_ret")

e.label("L_done")
if PROFILE == 1:
    e("s_waitcnt vmcnt(0) lgkmcnt(0)")
    e("s_memrealtime s[96:97]")
    e("s_lshl_b32 s46, s2, 3")
    e("s_add_u32 s46, s46, s3")
    e("s_lshl_b32 s46, s46, 7")
    e(f"s_add_u32 s46, s46, 0x{TS_BASE:x}")
    e("s_mov_b64 exec, 1")
    e("v_mov_b32 v1, s46")
    e("s_waitcnt lgkmcnt(0)")
    for k in range(9):
        e(f"v_mov_b32 v2, s{80+2*k}")
        e(f"v_mov_b32 v3, s{81+2*k}")
        e(f"global_store_dwordx2 v1, v[2:3], s[34:35] offset:{8*k}")
        e("s_nop 1")
if PROFILE == 3:
    e("s_waitcnt vmcnt(0) lgkmcnt(0)")
    e("s_memrealtime s[96:97]")
    e("s_mov_b64 exec, 1")
    e("v_mov_b32 v1, 0")
    e("s_waitcnt lgkmcnt(0)")
    for (wg, wv, lst) in ((7, 0, [(1, 0), (2, 1), (3, 2), (4, 3), (5, 4), (6, 5), (7, 6), (8, 7)]),
                          (0, 0, [(1, 8), (2, 9), (3, 10), (4, 11), (6, 12), (5, 13)]),
                          (0, 1, [(2, 14), (4, 15)])):
        l = e.newlab("Lpr")
        e(f"s_cmp_lg_u32 s2, {wg}")
        e(f"s_cbranch_scc1 {l}")
        e(f"s_cmp_lg_u32 s3, {wv}")
        e(f"s_cbranch_scc1 {l}")
        for k, d in lst:
            e(f"s_sub_u32 s46, s{80+2*k}, s80")
            e("v_mov_b32 v2, s46")
            e(f"global_store_dword v1, v2, s[32:33] offset:{4*d}")
            e("s_nop 1")
        e.label(l)
if PROFILE == 4:
    e("s_waitcnt vmcnt(0) lgkmcnt(0)")
    e("s_memrealtime s[96:97]")
    e("s_mov_b64 exec, 1")
    e("v_mov_b32 v1, 0")
    e("s_waitcnt lgkmcnt(0)")
    def emit(lst):
        for k, d in lst:
            l2 = e.newlab("Lz")
            e(f"s_cmp_eq_u32 s{80+2*k}, 0")
            e(f"s_cbranch_scc1 {l2}")
            e(f"s_sub_u32 s46, s{80+2*k}, s80")
            e("v_mov_b32 v2, s46")
            e(f"global_atomic_umax v1, v2, s[32:33] offset:{4*d}")
            e("s_nop 1")
            e.label(l2)
    e("s_cmp_eq_u32 s4, 7")
    e("s_cbranch_scc1 L_p4_tail")
    e("s_cmp_eq_u32 s3, 0")
    e("s_cbranch_scc1 L_p4_chain")
    emit([(2, 6), (4, 7)])
    e("s_branch L_end")
    e.label("L_p4_chain")
    emit([(1, 0), (2, 1), (3, 2), (4, 3), (6, 4), (5, 5)])
    e("s_branch L_end")
    e.label("L_p4_tail")
    emit([(1, 8), (2, 9), (3, 10), (4, 11), (5, 12), (6, 13), (7, 14), (8, 15)])
e.label("L_end")
e("s_endpgm")
e.raw(f".fill (24576+256-(.-{KNAME}))/4, 4, 0xbf810000")
e.raw(f""".section .rodata,"a"
.p2align 6
.amdhsa_kernel {KNAME}
  .amdhsa_next_free_vgpr 256
  .amdhsa_next_free_sgpr 102
  .amdhsa_accum_offset 256
  .amdhsa_group_segment_fixed_size 0
  .amdhsa_kernarg_size 112
  .amdhsa_user_sgpr_count 2
  .amdhsa_user_sgpr_kernarg_segment_ptr 1
  .amdhsa_system_sgpr_workgroup_id_x 1
.end_amdhsa_kernel""")
sys.stdout.write(e.text())
sys.stderr.write(f"maxv {e.maxv} maxs {e.maxs} lines {len(e.lines)}\n")
```
